```python
import torch

def _softmax(x, axis=-1):
    return torch.softmax(x, dim=axis)
def _gelu(x):
    return torch.nn.functional.gelu(x, approximate="tanh")
def _silu(x):
    return torch.nn.functional.silu(x)
def _sigmoid(x):
    return torch.sigmoid(x)
def _layernorm(x, axis=-1, eps=1e-5):
    m = x.mean(dim=axis, keepdim=True)
    v = x.var(dim=axis, keepdim=True, unbiased=False)
    return (x - m) / torch.sqrt(v + eps)
def _scatter_add(tgt, idx, src, axis=0):
    return tgt.clone().index_add_(axis, idx, src)
def _segment_sum(src, seg, n):
    out = torch.zeros((n,) + src.shape[1:], dtype=src.dtype)
    return out.index_add_(0, seg, src)
def _pad(x, pw):
    flat = tuple(v for pair in reversed(pw) for v in pair)
    return torch.nn.functional.pad(x, flat)

kernel_name = 'recurrent_scan__spectral_gfnet__geglu_ffn__prompt'

def setup_inputs():

    _w = (lambda a: (lambda t: t.to(torch.bfloat16) if t.is_floating_point() else t)(torch.as_tensor(a)))
    def _A_setup():
        B, S, D = 1, 2048, 640
        Df = D // 2 + 1
        return {
            "x": _w((lambda *s: torch.randn(*s, dtype=torch.bfloat16) * 0.05)(B, S, D)),
            "w_r": _w((lambda *s: torch.randn(*s, dtype=torch.bfloat16) * 0.05)(S, Df) * 0.02),
            "w_i": _w((lambda *s: torch.randn(*s, dtype=torch.bfloat16) * 0.05)(S, Df) * 0.02),
        }
    _A_in = _A_setup()

    def _B_setup():
        B, S, D, F = 1, 2048, 640, 1536
        return {
            "x": _w((lambda *s: torch.randn(*s, dtype=torch.bfloat16) * 0.05)(B, S, D)),
            "w_gate": _w((lambda *s: torch.randn(*s, dtype=torch.bfloat16) * 0.05)(D, F)),
            "w_up": _w((lambda *s: torch.randn(*s, dtype=torch.bfloat16) * 0.05)(D, F)),
            "w_down": _w((lambda *s: torch.randn(*s, dtype=torch.bfloat16) * 0.05)(F, D)),
        }
    _B_in = _B_setup()

    return {
        "A_x": _A_in["x"],
        "A_w_r": _A_in["w_r"],
        "A_w_i": _A_in["w_i"],
        "B_x": _B_in["x"],
        "B_w_gate": _B_in["w_gate"],
        "B_w_up": _B_in["w_up"],
        "B_w_down": _B_in["w_down"],
    }

def reference(A_x, A_w_r, A_w_i, B_x, B_w_gate, B_w_up, B_w_down):
    def _A_ref(x, w_r, w_i):
        B, S, D = x.shape
        X = (lambda x, axes=(-2,-1): torch.fft.rfft2(x.float(), dim=axes))(x, axes=(-2, -1))
        W = w_r + 1j * w_i
        X = X * W
        y = (lambda x, s, axes=(-2,-1): torch.fft.irfft2(x, s=s, dim=axes).to(torch.bfloat16))(X, (S, D), axes=(-2, -1))
        return y

    def _B_ref(x, w_gate, w_up, w_down):
        return (_gelu(x @ w_gate) * (x @ w_up)) @ w_down

    x = A_x
    xn = _layernorm(x, axis=-1)
    s = _A_ref(xn, A_w_r, A_w_i)
    g = _silu(_B_ref(xn, B_w_gate, B_w_up, B_w_down))
    return x + s * g
```

```python
import struct
from kasm import *
NAME="recurrent_scan__spectral_gfnet__geglu_ffn__prompt"
WS_T=0x000000; WS_U=0x300000; WS_H=0x600000; WS_ST=0xC00000; WS_FL=0xC10000; WS_DBG=0xD00000; WS_SIZE=0x1000000
def fl(x): return '0x%08x'%struct.unpack('<I',struct.pack('<f',x))[0]
SX,SW,SA,SB,SD,SO,SG='s[4:7]','s[8:11]','s[12:15]','s[16:19]','s[20:23]','s[24:27]','s[28:31]'
WV='s32'
def srd(S,base,ptr,size):
    S(f'''s_mov_b32 s{base}, s{ptr}
    s_mov_b32 s{base+1}, s{ptr+1}
    s_mov_b32 s{base+2}, {size}
    s_mov_b32 s{base+3}, 0x20000''')
def prologue(S,nwg,endl):
    S(f'''s_load_dwordx16 s[36:51], s[0:1], 0
    s_load_dwordx4 s[52:55], s[0:1], 64
    s_cmp_ge_u32 s2, {nwg}
    s_cbranch_scc1 {endl}
    v_lshrrev_b32 v1, 6, v0
    v_and_b32 v0, 63, v0
    v_readfirstlane_b32 {WV}, v1
    s_waitcnt lgkmcnt(0)''')
    srd(S,4,36,2048*640*2); srd(S,8,54,WS_SIZE); srd(S,24,50,2048*640*2); srd(S,28,52,256); srd(S,20,48,1536*640*2)
def srd_spec(S): srd(S,12,38,2048*321*2); srd(S,16,40,2048*321*2)
def srd_ffn(S): srd(S,12,44,640*1536*2); srd(S,16,46,640*1536*2)
HEAD='.amdgcn_target "amdgcn-amd-amdhsa--gfx950"\n.text\n'
def kstart(name): return f".text\n.globl {name}\n.p2align 8\n.type {name},@function\n{name}:\n"
def kd(name, vg=512, acc=256, sg=102):
    return f""".section .rodata,"a"
.p2align 6
.amdhsa_kernel {name}
  .amdhsa_next_free_vgpr {vg}
  .amdhsa_next_free_sgpr {sg}
  .amdhsa_accum_offset {acc}
  .amdhsa_group_segment_fixed_size 0
  .amdhsa_kernarg_size 80
  .amdhsa_user_sgpr_count 2
  .amdhsa_user_sgpr_kernarg_segment_ptr 1
  .amdhsa_system_sgpr_workgroup_id_x 1
.end_amdhsa_kernel
.text
"""
def gen_cos_frag(S, dst, vf, vph, mults, tmp, dstk='a', neg=False, mask=None):
    for i,m in enumerate(mults):
        if m==0: S(f'v_cos_f32 v{tmp+i}, v{vph}')
        else:
            S(f'v_fmamk_f32 v{tmp+i}, v{vf}, {fl(m)}, v{vph}')
    for i,m in enumerate(mults):
        if m!=0: S(f'v_cos_f32 v{tmp+i}, v{tmp+i}')
    for i in range(4):
        d = dst+i if dstk=='v' else tmp+2*i
        S(f'v_cvt_pk_bf16_f32 v{d}, v{tmp+2*i}, v{tmp+2*i+1}')
        if mask is not None: S(f'v_and_b32 v{d}, v{mask}, v{d}')
    if dstk=='a':
        for i in range(4): S(f'v_accvgpr_write_b32 a{dst+i}, v{tmp+2*i}')
```

```python
from common import *
def gen_F(S, sB='s33', sC='s34', mega=False):
    RAW=96; ACC=16; GF=0; AF=32
    LX=0; LO=40960
    S(f'''v_lshrrev_b32 v2, 3, v0
    v_and_b32 v3, 7, v0
    s_mov_b32 s56, 20480
    v_mul_lo_u32 v4, v2, s56
    v_lshl_add_u32 v5, v3, 3, v4           ; x2 voffset
    v_lshl_add_u32 v4, v3, 4, v4           ; x4 voffset
    s_mul_i32 s57, {WV}, {8*20480}
    s_mul_i32 s58, {sB}, 1280
    s_add_u32 s57, s57, s58''')
    for i in range(4):
        S(f'''s_add_u32 s58, {sC}, {i}
        s_and_b32 s58, s58, 3
        s_mul_i32 s{60+i}, s58, 320
        s_lshl_b32 s{68+i}, s58, 5           ; chunk*32
        s_mul_i32 s{64+i}, s58, {32*20480}
        s_add_u32 s{64+i}, s{64+i}, s57''')
    for i in range(4):
        for qi in (1,2,3,0):
            r=RAW+40*i+10*qi
            S(f'''s_add_u32 s58, s{64+i}, s{60+qi}
            buffer_load_dwordx4 v[{r}:{r+3}], v4, {SX}, s58 offen
            buffer_load_dwordx4 v[{r+4}:{r+7}], v4, {SX}, s58 offen offset:128
            buffer_load_dwordx2 v[{r+8}:{r+9}], v5, {SX}, s58 offen offset:256''')
    S(f'''v_and_b32 v6, 31, v0
    s_lshl_b32 s58, {WV}, 5
    v_add_u32 v6, s58, v6                  ; jr
    v_lshrrev_b32 v7, 1, v6
    v_cmp_eq_u32 vcc, 1, v6
    v_and_b32 v8, 1, v6
    v_cndmask_b32 v7, v7, 64, vcc
    v_cndmask_b32 v8, v8, 0, vcc
    v_cvt_f32_u32 v7, v7
    v_cvt_f32_u32 v8, v8
    v_mul_f32 v7, {fl(1/128)}, v7          ; f
    v_mul_f32 v8, {fl(-0.25)}, v8          ; phi
    v_lshrrev_b32 v9, 5, v0
    v_lshlrev_b32 v9, 3, v9''')
    for i in range(4):
        S(f'''v_add_u32 v10, s{68+i}, v9
        v_cvt_f32_u32 v10, v10
        v_fma_f32 v10, v7, v10, v8''')
        for tt in range(2):
            gen_cos_frag(S, GF+8*i+4*tt, 7, 10, [16*tt+k for k in range(8)], ACC)
    S(f'''s_lshl_b32 s58, {WV}, 3
    v_add_u32 v6, s58, v2
    v_mul_u32_u24 v6, 320, v6
    v_lshl_add_u32 v7, v3, 3, v6
    v_lshl_add_u32 v6, v3, 4, v6
    v_bfe_u32 v8, v0, 2, 2                 ; r
    v_add_u32 v8, v8, v9                   ; + 8*(g>>1)
    v_mul_u32_u24 v8, 320, v8
    v_bfe_u32 v10, v0, 4, 1
    v_lshl_add_u32 v8, v10, 5, v8
    v_and_b32 v10, 1, v0
    v_lshl_add_u32 v8, v10, 4, v8
    v_bfe_u32 v10, v0, 1, 1
    v_lshl_add_u32 v8, v10, 3, v8
    s_mov_b32 s59, 0x3f803f80
    s_mov_b32 s72, 0xffff0000''')
    S(f'''s_lshl_b32 s58, {sB}, 2
    s_add_u32 s58, s58, {sC}
    s_lshl_b32 s58, s58, 2
    s_add_u32 s58, s58, {WV}
    s_lshl_b32 s58, s58, 6
    s_add_u32 s73, s58, {WS_ST}
    v_lshlrev_b32 v9, 3, v2
    v_lshl_add_u32 v9, v3, 28, v9''')
    for i in range(4):
        R=RAW+40*i
        S('v_mov_b32 v10, 0\nv_mov_b32 v11, 0\nv_mov_b32 v12, 0\nv_mov_b32 v13, 0')
        order=[10*qi+k for qi in (1,2,3,0) for k in range(10)]
        for n,k in enumerate(order):
            S(f'v_dot2c_f32_bf16 v{10+2*(n&1)}, s59, v{R+k}\nv_dot2c_f32_bf16 v{11+2*(n&1)}, v{R+k}, v{R+k}')
        T=R+10
        for k in range(10):
            S(f'v_lshlrev_b32 v{T+2*k}, 16, v{R+k}\nv_and_b32 v{T+2*k+1}, s72, v{R+k}')
        S('v_add_f32 v10, v10, v12\nv_add_f32 v11, v11, v13')
        for dpp in ('quad_perm:[1,0,3,2]','quad_perm:[2,3,0,1]','row_half_mirror'):
            S(f'v_add_f32_dpp v10, v10, v10 {dpp} row_mask:0xf bank_mask:0xf\nv_add_f32_dpp v11, v11, v11 {dpp} row_mask:0xf bank_mask:0xf')
        S(f'''v_mul_f32 v10, {fl(1/640)}, v10        ; mean
        v_mul_f32 v12, v10, v10
        v_mul_f32 v11, {fl(1/640)}, v11
        v_sub_f32 v11, v11, v12
        v_max_f32 v11, 0, v11
        v_add_f32 v11, {fl(1e-5)}, v11
        v_rsq_f32 v11, v11
        v_mul_f32_e64 v12, -v10, v11''')
        if i==0: S(f'buffer_store_dwordx2 v[10:11], v9, {SW}, s73 offen sc1', tok='F_st')
        for k in range(10):
            S(f'v_pk_fma_f32 v[{T+2*k}:{T+2*k+1}], v[{T+2*k}:{T+2*k+1}], v[10:11], v[12:13] op_sel:[0,1,0] op_sel_hi:[1,1,0]')
        for k in range(10):
            S(f'v_cvt_pk_bf16_f32 v{R+k}, v{T+2*k}, v{T+2*k+1}')
        o=LX+i*32*320
        S(f'''ds_write_b128 v6, v[{R}:{R+3}] offset:{o}
        ds_write_b128 v6, v[{R+4}:{R+7}] offset:{o+128}''')
        S(f'ds_write_b64 v7, v[{R+8}:{R+9}] offset:{o+256}', tok=f'F_w{i}')
        S('s_barrier', need=[f'F_w{i}'])
        for t in range(5):
            for tt in range(2):
                a=AF+8*t+4*tt
                for u in range(2):
                    S(f'ds_read_b64_tr_b16 a[{a+2*u}:{a+2*u+1}], v8 offset:{o+(16*tt+4*u)*320+64*t}')
        for t in range(5):
            for tt in range(2):
                a=AF+8*t+4*tt; g=GF+8*i+4*tt; c=ACC+16*t
                S(f'v_mfma_f32_32x32x16_bf16 v[{c}:{c+15}], a[{a}:{a+3}], a[{g}:{g+3}], '+('0' if i==0 and tt==0 else f'v[{c}:{c+15}]'))
    S(f'''s_mul_i32 s58, {WV}, 10240
    s_add_u32 s58, s58, {LO}
    v_and_b32 v2, 31, v0
    v_lshrrev_b32 v3, 5, v0
    v_bfe_u32 v4, v0, 1, 2
    v_xor_b32 v3, v3, v4
    v_lshlrev_b32 v3, 4, v3
    v_lshl_add_u32 v2, v2, 6, v3
    v_add_u32 v2, s58, v2
    v_xor_b32 v3, 32, v2
    v_lshl_add_u32 v4, v0, 4, s58
    v_lshrrev_b32 v5, 3, v0
    v_and_b32 v6, 3, v5
    v_and_b32 v7, 3, v0
    v_xor_b32 v6, v6, v7
    v_lshlrev_b32 v6, 4, v6
    s_mov_b32 s56, 40960
    v_mul_lo_u32 v5, v5, s56
    v_bfe_u32 v7, v0, 2, 1
    v_mul_u32_u24 v7, 1280, v7
    v_add3_u32 v5, v5, v6, v7
    s_mul_i32 s56, {WV}, {16*40960}
    s_mul_i32 s57, {sB}, 2560
    s_add_u32 s56, s56, s57
    s_add_u32 s56, s56, s60
    s_add_u32 s56, s56, {WS_T}
    s_add_u32 s57, s56, {8*40960}''')
    for t in range(5):
        c=ACC+16*t; P=RAW+8*t
        for k in range(8): S(f'v_cvt_pk_bf16_f32 v{P+k}, v{c+2*k}, v{c+2*k+1}')
        S(f'ds_write_b128 v2, v[{P}:{P+3}] offset:{2048*t}')
        S(f'ds_write_b128 v3, v[{P+4}:{P+7}] offset:{2048*t}')
    for t in range(5):
        P=RAW+40+8*t
        S(f'ds_read_b128 v[{P}:{P+3}], v4 offset:{2048*t}\nds_read_b128 v[{P+4}:{P+7}], v4 offset:{2048*t+1024}')
    for t in range(5):
        P=RAW+40+8*t
        S(f'buffer_store_dwordx4 v[{P}:{P+3}], v5, {SW}, s56 offen offset:{64*t} sc1')
        S(f'buffer_store_dwordx4 v[{P+4}:{P+7}], v5, {SW}, s57 offen offset:{64*t} sc1', tok=f'F_o{t}')
```

```python
from common import *
from k_r import trig,toA
M32='v_mfma_f32_32x32x16_bf16'
sM,sN,sB2,sN2,sLF='s33','s34','s35','s3','s77'
def g_ids(S, lbase):
    S(f'''s_lshr_b32 {sLF}, s2, 3
    s_sub_u32 {sLF}, {sLF}, {lbase}
    s_and_b32 s56, {sLF}, 3
    s_lshr_b32 s57, {sLF}, 2
    s_and_b32 s58, s2, 1
    s_lshl_b32 s59, s58, 2
    s_add_u32 {sM}, s59, s56
    s_bfe_u32 s60, s2, 0x20001
    s_mul_i32 s60, s60, 6
    s_add_u32 {sN}, s60, s57
    s_lshl_b32 s59, s58, 3
    s_bfe_u32 s60, s2, 0x10001
    s_lshl_b32 s60, s60, 2
    s_add_u32 s59, s59, s60
    s_add_u32 {sB2}, s59, s56
    s_bfe_u32 s60, s2, 0x10002
    s_mul_i32 s60, s60, 5
    s_add_u32 {sN2}, s60, s57''')
def B1(t): return f'v[{160+4*t}:{163+4*t}]' if t<24 else f'a[{192+4*(t-24)}:{195+4*(t-24)}]'
def B1h(t,u):
    k,b=('v',160+4*t) if t<24 else ('a',192+4*(t-24)); return f'{k}[{b+2*u}:{b+2*u+1}]'
ACC=32; CS=64; XF=80; ONES=112; TMP=116
SLOT=[0,40960,81920]; LZ=122880
UNIT=[40960+16384*u for u in range(7)]; STG=[4,5,6,0,1,2,3,4,5,6]
vXD,vWG,vWU,vL16,vTR,vTR2,vXA,vST,vWD,vT2=1,2,3,4,5,6,8,7,16,17
def ldsoff(o): return (1,o-65536) if o>=65536 else (0,o)
def x_dma(p,j):
    s=Stream()
    s(f's_add_u32 m0, s78, {SLOT[p%3]+j*(4096-128)}')
    s(f'buffer_load_dwordx4 v{vXD}, {SX}, s{80+p} offen offset:{128*j} lds', tok=f'x{p}_{j}')
    return s
def x_read(p,t,fr):
    hi,o=ldsoff(SLOT[p%3]+(t>>2)*4096)
    return I(f'ds_read_b128 v[{XF+4*fr}:{XF+4*fr+3}], v{vXA+4*hi+(t&3)} offset:{o}', tok=f'xr{p}_{t}')
def b2_dma(pc):
    s=Stream()
    s(f's_add_u32 m0, s79, {(pc&7)*1024}')
    s(f'buffer_load_dwordx4 v{vWD}, {SD}, s88 offen lds', tok=f'b2_{pc}')
    s('s_add_u32 s88, s88, 10240')
    return s
def b2_read(T):
    o=[]
    for ch in range(2):
        for u in range(2):
            a=8*T+4*ch+2*u
            o.append(I(f'ds_read_b64_tr_b16 a[{a}:{a+1}], v{vT2+ch} offset:{(T&3)*2048+u*512}', need=[f'b2_{2*T+1}'], tok=f'b2r{T}_{ch}{u}'))
    return o
def b2_addr(S):
    S(f'''v_lshrrev_b32 v20, 3, v0
    v_and_b32 v21, 7, v0
    v_and_b32 v22, 2, v20
    v_lshlrev_b32 v22, 1, v22
    v_xor_b32 v21, v21, v22
    v_lshlrev_b32 v21, 4, v21
    v_mul_u32_u24 v22, 1280, v20
    v_add_u32 v{vWD}, v21, v22
    s_lshl_b32 s79, {WV}, 13
    s_add_u32 s79, s79, {LZ}
    s_mul_i32 s88, {WV}, {384*1280}
    s_lshl_b32 s56, {sN2}, 7
    s_add_u32 s88, s88, s56
    v_bfe_u32 v20, v0, 2, 2
    v_lshrrev_b32 v21, 5, v0
    v_lshlrev_b32 v21, 10, v21
    v_lshl_add_u32 v21, v20, 7, v21
    v_lshrrev_b32 v20, 1, v20
    v_lshl_add_u32 v21, v20, 6, v21
    v_bfe_u32 v20, v0, 4, 1
    v_lshl_add_u32 v21, v20, 5, v21
    v_and_b32 v20, 3, v0
    v_lshl_add_u32 v21, v20, 3, v21
    v_add_u32 v{vT2}, s79, v21
    v_xor_b32 v{vT2+1}, 64, v{vT2}''')
def epilogue1(p):
    s=Stream(); A=ACC+16*(p&1); st=TMP+2*(p&1); K=TMP+4; T=TMP+8; O=TMP+32+4*(p&1)
    c1=2*0.7978845608028654*1.4426950408889634
    s(f'''v_mul_f32 v{K+2}, v{st+1}, v{st+1}
    v_mul_f32 v{K}, {fl(-c1)}, v{st+1}
    v_mul_f32 v{K+1}, {fl(0.044715)}, v{K+2}
    v_rcp_f32 v{K+2}, v{K+2}
    v_mul_f32 v{K+1}, v{K+1}, v{K}''')
    for h in range(2):
        R=range(4*h,4*h+4)
        for k in R: s(f'v_fma_f32 v{A+k}, -v{st}, v{CS+k}, v{A+k}')
        for k in R: s(f'v_mul_f32 v{T+k}, v{A+k}, v{A+k}')
        for k in R: s(f'v_fma_f32 v{T+k}, v{T+k}, v{K+1}, v{K}')
        for k in R: s(f'v_mul_f32 v{T+k}, v{T+k}, v{A+k}')
        for k in R: s(f'v_exp_f32 v{T+k}, v{T+k}\nv_fma_f32 v{A+8+k}, -v{st}, v{CS+8+k}, v{A+8+k}')
        for k in R: s(f'v_fma_f32 v{T+k}, v{T+k}, v{K+2}, v{K+2}')
        for k in R: s(f'v_rcp_f32 v{T+k}, v{T+k}\nv_mul_f32 v{A+k}, v{A+k}, v{A+8+k}')
        for k in R: s(f'v_mul_f32 v{A+k}, v{A+k}, v{T+k}')
        for k in range(2*h,2*h+2): s(f'v_cvt_pk_bf16_f32 v{O+k}, v{A+2*k}, v{A+2*k+1}')
    B=4*(p&1)+(p>>1)
    s(f's_add_u32 s56, s89, {B*96*1024}')
    s(f'buffer_store_dwordx4 v[{O}:{O+3}], v{vL16}, {SW}, s56 offen sc1', tok=f'h{p}')
    return s
def st_load(p):
    st=TMP+2*(p&1); B=4*(p&1)+(p>>1)
    return I(f'buffer_load_dwordx2 v[{st}:{st+1}], v{vST}, {SW}, s90 offen offset:{B*256} sc1')
def gen_G1(S, with_b2=False):
    S(f'''v_lshrrev_b32 v20, 3, v0
    v_and_b32 v21, 7, v0
    v_and_b32 v22, 2, v20
    v_xor_b32 v22, v21, v22
    v_mul_u32_u24 v23, 3072, v20
    v_lshl_add_u32 v{vWG}, v22, 4, v23
    v_xor_b32 v{vWU}, 64, v{vWG}
    s_lshl_b32 s56, {WV}, 2
    v_lshrrev_b32 v22, 4, v0
    v_add_u32 v22, s56, v22
    v_and_b32 v22, 7, v22
    v_xor_b32 v22, v21, v22
    v_mul_u32_u24 v23, 20480, v20
    v_lshl_add_u32 v{vXD}, v22, 4, v23
    s_lshl_b32 s78, {WV}, 10
    s_mul_i32 s56, {WV}, {8*20480}
    s_mul_i32 s57, {sM}, 2560
    s_add_u32 s80, s56, s57
    s_mul_i32 s91, {WV}, {16*3072}
    s_lshl_b32 s56, {sN}, 7
    s_add_u32 s91, s91, s56
    s_lshl_b32 s92, {WV}, 12''')
    def w_dma(i):
        s=Stream()
        for o in range(2):
            s(f's_add_u32 s56, s91, {(64*i+8*o)*3072}')
            s(f's_add_u32 m0, s92, {UNIT[STG[i]]+o*2048}')
            s(f'buffer_load_dwordx4 v{vWG}, {SA}, s56 offen lds')
            s(f's_add_u32 m0, s92, {UNIT[STG[i]]+o*2048+1024}')
            s(f'buffer_load_dwordx4 v{vWU}, {SB}, s56 offen lds', tok=f'w{i}_{o}')
        return s
    for i in range(7): S.extend(w_dma(i)); S.extend(x_dma(0,i))
    for j in (7,8,9): S.extend(x_dma(0,j))
    for p in range(1,8): S(f's_add_u32 s{80+p}, s80, {(p&1)*1280+(p>>1)*32*20480}')
    S(f'''v_lshlrev_b32 v{vL16}, 4, v0
    v_and_b32 v20, 31, v0
    v_lshlrev_b32 v{vST}, 3, v20
    s_lshl_b32 s90, {sM}, 11
    s_add_u32 s90, s90, {WS_ST}
    s_mul_i32 s89, {sM}, {8*96}
    s_lshl_b32 s56, {sN}, 2
    s_add_u32 s89, s89, s56
    s_add_u32 s89, s89, {WV}
    s_lshl_b32 s89, s89, 10
    s_add_u32 s89, s89, {WS_H}
    v_lshrrev_b32 v21, 5, v0
    v_bfe_u32 v22, v0, 1, 3
    v_xor_b32 v22, v21, v22
    v_lshlrev_b32 v22, 4, v22
    v_lshl_add_u32 v{vXA}, v20, 7, v22''')
    for tl in range(1,4): S(f'v_xor_b32 v{vXA+tl}, {32*tl}, v{vXA}')
    for tl in range(4): S(f'v_add_u32 v{vXA+4+tl}, 0x10000, v{vXA+tl}')
    S(f'''v_bfe_u32 v20, v0, 2, 2
    v_bfe_u32 v22, v0, 3, 2                ; (r>>1) + 2*mat
    v_xor_b32 v22, {WV}, v22
    v_lshlrev_b32 v22, 5, v22
    v_lshl_add_u32 v22, v20, 7, v22
    v_lshrrev_b32 v20, 4, v0
    v_lshl_add_u32 v22, v20, 10, v22
    v_and_b32 v20, 1, v0
    v_lshl_add_u32 v22, v20, 4, v22
    v_bfe_u32 v20, v0, 1, 1
    v_lshl_add_u32 v22, v20, 3, v22
    v_add_u32 v{vTR}, {UNIT[0]}, v22
    v_add_u32 v{vTR2}, {UNIT[4]}, v22''')
    for k in range(4): S(f'v_mov_b32 v{ONES+k}, 0x3f803f80')
    if with_b2: b2_addr(S)
    S.append(st_load(0))
    def mf0(i):
        g=[]
        for tl in range(4):
            t=4*i+tl; fr=XF+4*(4*(i&1)+tl)
            g.append([I(f'{M32} v[{ACC}:{ACC+15}], {B1(t)}, v[{fr}:{fr+3}], '+('0' if t==0 else f'v[{ACC}:{ACC+15}]'))])
            g.append([I(f'{M32} v[{CS}:{CS+15}], {B1(t)}, v[{ONES}:{ONES+3}], '+('0' if t==0 else f'v[{CS}:{CS+15}]'))])
        return g
    for i in range(10):
        S('s_barrier', need=[f'w{i}_1', f'x0_{i}']+([f'xr0_{4*i-1}'] if i else []))
        rd=[]
        u_=STG[i]; va,o=(vTR,16384*u_) if u_<4 else (vTR2,16384*(u_-4))
        for tl in range(4):
            t=4*i+tl
            for u in range(2): rd.append(I(f'ds_read_b64_tr_b16 {B1h(t,u)}, v{va} offset:{o+tl*4096+u*512}'))
            rd.append(x_read(0,t,4*(i&1)+tl))
        dm=[]
        if 1<=i<=3: dm=list(w_dma(i+6))
        if i==4: dm=[x for j in range(0,4) for x in x_dma(1,j)]
        if i==5: dm=[x for j in range(4,8) for x in x_dma(1,j)]
        if i==6: dm=[x for j in range(8,10) for x in x_dma(1,j)]
        if i==0: S.extend(rd)
        else:
            g=mf0(i-1); weave(g,rd,0,4); weave(g,dm,3,8); S.extend(flat(g))
    D=4
    groups=mf0(9)
    base={}
    for p in range(1,8):
        base[p]=len(groups); A=ACC+16*(p&1)
        for t in range(40):
            fr=XF+4*(t&7)
            groups.append([I(f'{M32} v[{A}:{A+15}], {B1(t)}, v[{fr}:{fr+3}], '+('0' if t==0 else f'v[{A}:{A+15}]'))])
    pc=0; Tn=0
    for p in range(1,8):
        b=base[p]
        groups[b-3].append(I('s_barrier', need=[f'x{p}_9', f'xr{p-1}_39']))
        groups[b-3]+= [x_read(p,0,0), x_read(p,1,1)]
        groups[b-2]+= [x_read(p,2,2), x_read(p,3,3)]
        for t in range(4,40,2):
            groups[b+t-5]+= [x_read(p,t,t&7), x_read(p,t+1,(t+1)&7)]
        if p<7: weave(groups,[x_dma(p+1,j) for j in range(10)],b-2,b+18)
        weave(groups,list(epilogue1(p-1)),b+2,b+36)
        groups[b+20].append(st_load(p))
        if with_b2:
            if p>1:
                rd=[x for T in range(4*(p-2),4*(p-1)) for x in b2_read(T)]
                weave(groups,rd,b+2,b+18)
            if p<7:
                d=[b2_dma(q) for q in range(8*(p-1),8*p)]
                if p>1: d[0][1].need.append(f'b2r{4*(p-1)-1}_11')
                weave(groups,d,b+20,b+36)
    S.extend(flat(groups))
    S.extend(epilogue1(7))

def gen_G2(S, endl, standalone=True):
    S(f's_cmp_ge_u32 {sLF}, 20\ns_cbranch_scc1 {endl}')
    if standalone:
        b2_addr(S); S(f'v_lshlrev_b32 v{vL16}, 4, v0')
        for rnd in range(6):
            for q in range(8*rnd,8*rnd+8):
                d=b2_dma(q)
                if rnd and q%8==0: d[1].need.append(f'b2r{4*rnd-1}_11')
                S.extend(d)
            for T in range(4*rnd,4*rnd+4): S.extend(b2_read(T))
    HF=160; AG=192; AU=224; RT=96; GG=128
    LP=[0,32768]; LS=65536; LU=98304
    vPW,vPR,vXO,vUD,vUT=8,12,14,15,18
    S(f'''s_mul_i32 s80, {sB2}, {4*96}
    s_mul_i32 s56, {WV}, 24
    s_add_u32 s80, s80, s56
    s_lshl_b32 s80, s80, 10
    s_add_u32 s80, s80, {WS_H}''')
    def h_load(r,T):
        s=Stream()
        if T%4==0: s(f's_add_u32 s81, s80, {r*96*1024+T*1024}')
        s(f'buffer_load_dwordx4 v[{HF+4*T}:{HF+4*T+3}], v{vL16}, {SW}, s81 offen offset:{(T&3)*1024} sc1')
        return s
    for T in range(24): S.extend(h_load(0,T))
    S(f'''v_and_b32 v20, 31, v0
    v_lshrrev_b32 v21, 5, v0
    v_and_b32 v22, 7, v0
    v_xor_b32 v21, v21, v22
    v_lshlrev_b32 v21, 4, v21
    v_lshl_add_u32 v21, v20, 8, v21
    s_lshl_b32 s56, {WV}, 13
    v_add_u32 v{vPW}, s56, v21''')
    for rq in range(1,4): S(f'v_xor_b32 v{vPW+rq}, {32*rq}, v{vPW}')
    S(f'''v_lshrrev_b32 v20, 3, v0
    v_lshlrev_b32 v21, 1, v22
    v_xor_b32 v21, v21, v20
    v_lshlrev_b32 v21, 4, v21
    v_lshl_add_u32 v21, v20, 8, v21
    s_lshl_b32 s56, {WV}, 11
    v_add_u32 v{vPR}, s56, v21
    v_xor_b32 v{vPR+1}, 16, v{vPR}
    v_mul_u32_u24 v21, 20480, v20
    v_lshl_add_u32 v{vXO}, v22, 4, v21
    v_and_b32 v21, 2, v20
    v_lshlrev_b32 v21, 1, v21
    v_xor_b32 v21, v21, v22
    v_lshlrev_b32 v21, 4, v21
    v_and_b32 v23, 1, v20
    v_mul_u32_u24 v23, 1280, v23
    v_lshrrev_b32 v20, 4, v0
    v_mul_u32_u24 v20, 40960, v20
    v_add3_u32 v{vUD}, v20, v21, v23
    s_sub_u32 s56, {LU}, s79
    v_add_u32 v{vUT}, s56, v{vT2}
    v_xor_b32 v{vUT+1}, 64, v{vUT}
    s_mul_i32 s82, {sB2}, 1280
    s_lshl_b32 s56, {sN2}, 7
    s_add_u32 s83, s82, s56
    s_add_u32 s82, s83, s82
    s_mul_i32 s56, {WV}, {16*40960}
    s_add_u32 s82, s82, s56
    s_add_u32 s82, s82, {WS_U}             ; U soffset
    s_mul_i32 s56, {WV}, {8*20480}
    s_add_u32 s83, s83, s56
    s_lshl_b32 s84, {WV}, 12
    s_add_u32 s84, s84, {LU}
    s_mov_b32 s85, {fl(-1.4426950408889634)}
    s_mov_b32 s86, {fl(2048*640/2)}
    s_mov_b32 s87, 0xffff0000''')
    gs=Stream()
    gs(f'''v_and_b32 v20, 31, v0
    s_lshl_b32 s56, {WV}, 5
    v_add_u32 v20, s56, v20
    v_cvt_f32_u32 v20, v20
    v_mul_f32 v21, 0.5, v20
    v_cos_f32 v21, v21
    v_mul_f32 v20, {fl(1/128)}, v20
    v_lshrrev_b32 v22, 5, v0
    v_lshlrev_b32 v22, 2, v22
    v_cvt_f32_u32 v22, v22
    v_mul_f32 v22, v22, v20
    v_cmp_gt_u32 vcc, 32, v0''')
    for T in range(8):
        trig(gs,24,20,22,[8*T+k for k in range(4)])
        if T==0: gs('v_cndmask_b32 v28, v28, v21, vcc')
        for k in range(4): gs(f'v_cvt_pk_bf16_f32 v{24+k}, v{24+k}, v{28+k}')
        toA(gs,AG+4*T,24,4)
    def pwrite(A,base,tok):
        s=Stream()
        for ch in range(2):
            for rq in range(4):
                s(f'ds_write_b128 v{vPW+rq}, v[{A+16*ch+4*rq}:{A+16*ch+4*rq+3}] offset:{base+128*ch}', tok=tok+f'{ch}{rq}')
        return s
    def reduce(r):
        s=Stream(); G=GG+8*r
        s('s_barrier', need=[f'pw{r}_13'])
        for wv in range(4):
            for u in range(2): s(f'ds_read_b128 v[{RT+8*wv+4*u}:{RT+8*wv+4*u+3}], v{vPR+u} offset:{LP[r&1]+wv*8192}')
        for k in range(8): s(f'v_add_f32 v{RT+k}, v{RT+k}, v{RT+8+k}')
        for k in range(8): s(f'v_add_f32 v{RT+16+k}, v{RT+16+k}, v{RT+24+k}')
        for k in range(8): s(f'v_add_f32 v{G+k}, v{RT+k}, v{RT+16+k}')
        for k in range(8): s(f'v_mul_f32 v{RT+k}, s85, v{G+k}')
        for k in range(8): s(f'v_exp_f32 v{RT+k}, v{RT+k}')
        for k in range(8): s(f'v_fma_f32 v{RT+k}, v{RT+k}, s86, s86')
        for k in range(8): s(f'v_rcp_f32 v{RT+k}, v{RT+k}')
        for k in range(8): s(f'v_mul_f32 v{G+k}, v{G+k}, v{RT+k}')
        return s
    groups=[]
    for r in range(4):
        A=32+32*(r&1); b=len(groups)
        for T in range(24):
            for ch in range(2):
                c=A+16*ch
                groups.append([I(f'{M32} v[{c}:{c+15}], a[{8*T+4*ch}:{8*T+4*ch+3}], v[{HF+4*T}:{HF+4*T+3}], '+('0' if T==0 else f'v[{c}:{c+15}]'))])
            if r<3: groups[-1].extend(h_load(r+1,T))
        if r==0: weave(groups,list(gs),b,b+48)
        if r>0:
            weave(groups,list(pwrite(32+32*((r-1)&1),LP[(r-1)&1],f'pw{r-1}_')),b+3,b+11)
            weave(groups,list(reduce(r-1)),b+14,b+46)
        if r==2:
            ud=Stream()
            for k in range(4):
                ud(f's_add_u32 m0, s84, {k*1024}')
                ud(f'buffer_load_dwordx4 v{vUD}, {SW}, s82 offen sc1 lds', tok=f'u{k}')
                ud(f's_add_u32 s82, s82, {4*40960}')
            weave(groups,list(ud),b,b+12)
    for g in groups:
        for i in g:
            if i.mn=='s_barrier' and 'pw2_13' in i.need: i.need.append('u3')
    S.extend(flat(groups))
    for r in range(4):
        S(f's_add_u32 s56, s83, {r*32*20480}')
        S(f'buffer_load_dwordx4 v[{HF+4*r}:{HF+4*r+3}], v{vXO}, {SX}, s56 offen')
    A=32
    sg=[]
    rd=[[I(f'ds_read_b64_tr_b16 a[{AU+4*(n&7)+2*u}:{AU+4*(n&7)+2*u+1}], v{vUT+(n&1)} offset:{(n>>1)*2048+u*512}') for u in range(2)] for n in range(16)]
    for n in range(6): S.extend(rd[n])
    for n in range(16):
        T,ch=n>>1,n&1; c=A+16*ch; f=AU+4*(n&7)
        sg.append([I(f'{M32} v[{c}:{c+15}], a[{f}:{f+3}], a[{AG+4*T}:{AG+4*T+3}], '+('0' if T==0 else f'v[{c}:{c+15}]'))])
        if n+6<16: sg[-1].extend(rd[n+6])
    weave(sg,list(pwrite(64,LP[1],'pw3_')),1,9)
    S.extend(flat(sg))
    S(f'v_add_u32 v20, {LS}, v{vPR}\nv_add_u32 v21, {LS}, v{vPR+1}')
    for rq in range(4): S(f'v_add_u32 v{vPW+rq}, {LS}, v{vPW+rq}')
    S.extend(pwrite(A,0,'sw_'))
    rr=reduce(3); rr[0].need.append('sw_13'); S.extend(rr)
    for r in range(4):
        for u in range(2): S(f'ds_read_b128 v[{32+8*r+4*u}:{35+8*r+4*u}], v{20+u} offset:{r*8192}')
    for r in range(4):
        X=HF+4*r; T=64+8*r
        for k in range(4): S(f'v_lshlrev_b32 v{T+2*k}, 16, v{X+k}\nv_and_b32 v{T+2*k+1}, s87, v{X+k}')
        for k in range(8): S(f'v_fmac_f32 v{T+k}, v{32+8*r+k}, v{GG+8*r+k}')
        for k in range(4): S(f'v_cvt_pk_bf16_f32 v{X+k}, v{T+2*k}, v{T+2*k+1}')
        S(f's_add_u32 s56, s83, {r*32*20480}')
        S(f'buffer_store_dwordx4 v[{X}:{X+3}], v{vXO}, {SO}, s56 offen')
```

```python
from common import *
A_S1F=0; A_S1FM=12; A_S2F=60; A_MF=100; A_MI=124; A_S2I=148; A_S1I=188; A_S1IM=200
V_W=176
L_T=0; L_E=40960; L_W=90112; WP=656
def toA(S,a,v,n=4):
    for i in range(n): S(f'v_accvgpr_write_b32 a{a+i}, v{v+i}')
def trig(S,tmp,vf,vph,mults):
    n=len(mults)
    for i,m in enumerate(mults):
        if m: S(f'v_fmamk_f32 v{tmp+n+i}, v{vf}, {fl(m)}, v{vph}')
    for i,m in enumerate(mults):
        src=tmp+n+i if m else vph
        S(f'v_cos_f32 v{tmp+i}, v{src}\nv_sin_f32 v{tmp+n+i}, v{src}')
def gen_R_consts(S,sT,part):
    T=16
    if part=='s1':
        S(f'''v_and_b32 v2, 31, v0
        v_lshrrev_b32 v3, 5, v0
        v_cvt_f32_u32 v3, v3                   ; hf
        v_bfe_u32 v8, v0, 3, 2
        v_mov_b32 v9, 0''')
        for merged in (0,1):
            if merged: S('v_and_b32 v2, 7, v0\nv_add_u32 v2, 32, v2')
            S(f'''v_lshrrev_b32 v4, 1, v2
            v_and_b32 v5, 1, v2
            v_cmp_eq_u32 vcc, 1, v2
            v_cndmask_b32 v4, v4, 20, vcc
            v_cndmask_b32 v5, v5, 0, vcc
            v_cvt_f32_u32 v4, v4
            v_cvt_f32_u32 v5, v5
            v_mul_f32 v4, {fl(1/40)}, v4
            v_mul_f32 v5, {fl(-0.25)}, v5
            v_mul_f32 v6, v4, v3
            v_fma_f32 v7, v6, 4.0, v5
            v_fma_f32 v6, v6, 4.0, v7''')
            for t in range(3):
                gen_cos_frag(S, T+8+4*t, 4, 6 if t<2 else 7, [16*t+k for k in range(8)], T, dstk='v')
            S(f'v_mov_b32 v{T+18}, 0\nv_mov_b32 v{T+19}, 0')
            if not merged: toA(S,A_S1F,T+8,12)
            else:
                for pr in range(4):
                    S(f'v_cmp_eq_u32 vcc, {pr}, v8')
                    for i in range(12): S(f'v_cndmask_b32 v{T+20+i}, v9, v{T+8+i}, vcc')
                    toA(S,A_S1FM+12*pr,T+20,12)
        S('v_and_b32 v2, 31, v0')
        for merged in (0,1):
            if merged: S('v_and_b32 v2, 7, v0\nv_add_u32 v2, 32, v2')
            S(f'''v_cvt_f32_u32 v4, v2
            v_mul_f32 v5, 0.5, v4
            v_cos_f32 v5, v5                       ; (-1)^p
            v_mul_f32 v4, {fl(1/40)}, v4
            v_mul_f32 v7, v4, v3
            v_add_f32 v7, v7, v7                   ; t=2 base
            v_add_f32 v6, v7, v7
            v_cmp_gt_u32 vcc, 32, v0''')
            for t in range(3):
                trig(S,T,4,6 if t<2 else 7,[8*t+k for k in range(4)])
                if t==0: S(f'v_cndmask_b32 v{T+4}, v{T+4}, v5, vcc')
                for k in range(4): S(f'v_cvt_pk_bf16_f32 v{T+8+4*t+k}, v{T+k}, v{T+4+k}')
            S(f'v_mov_b32 v{T+18}, 0\nv_mov_b32 v{T+19}, 0')
            if not merged: toA(S,A_S1I,T+8,12)
            else:
                for pr in range(4):
                    S(f'v_cmp_eq_u32 vcc, {pr}, v8')
                    for i in range(12): S(f'v_cndmask_b32 v{T+20+i}, v9, v{T+8+i}, vcc')
                    toA(S,A_S1IM+12*pr,T+20,12)
    if part=='m':
        S(f'''s_cmp_eq_u32 {sT}, 0
        s_cselect_b32 s56, 64, {sT}            ; t0
        s_cselect_b32 s57, 0, {fl(0.25)}
        s_cselect_b32 s58, 0xffff0000, -1
        s_cselect_b32 s59, 0x0000ffff, -1
        s_cselect_b64 s[60:61], 0, -1
        s_mov_b32 s62, 0x80008000
        v_and_b32 v2, 15, v0
        v_lshrrev_b32 v3, 4, v0
        v_cvt_f32_u32 v9, v3                   ; g''')
        for ot in range(2):
            sg=-1 if ot==0 else 1
            S(f'''v_lshl_add_u32 v4, v2, 7, {'s56' if ot==0 else sT}
            v_cvt_f32_u32 v4, v4
            v_mul_f32 v4, {fl(sg/2048)}, v4        ; f
            v_mul_f32 v5, v4, v9
            v_add_f32 v5, v5, v5                   ; e=0 base
            v_{'sub' if ot==0 else 'add'}_f32_e64 v6, v5, s57   ; e=1 base''')
            trig(S,T,4,5,[0,1,8,9]); trig(S,T+8,4,6,[0,1,8,9])
            for k in range(4):
                S(f'''v_cvt_pk_bf16_f32 v{T+16+k}, v{T+k}, v{T+8+k}
                v_cvt_pk_bf16_f32 v{T+20+k}, v{T+4+k}, v{T+12+k}''')
            for k in range(8): S(f'v_and_b32 v{T+16+k}, s{58+ot}, v{T+16+k}')
            for k in range(4): S(f'v_xor_b32 v{T+24+k}, s62, v{T+20+k}')
            toA(S,A_MF+12*ot,T+16,12)
        S(f'''v_and_b32 v7, 1, v0
        v_cmp_eq_u32 vcc, 1, v7
        s_or_b64 s[64:65], vcc, s[60:61]
        s_orn2_b64 s[66:67], s[60:61], vcc
        v_cvt_f32_u32 v7, v7
        v_mul_f32 v7, s57, v7                  ; e*quarter
        v_lshl_add_u32 v10, v3, 9, s56
        v_lshl_add_u32 v11, v3, 9, {sT}
        v_cvt_f32_u32 v10, v10
        v_cvt_f32_u32 v11, v11
        v_mul_f32 v10, {fl(1/128)}, v10
        v_mul_f32 v11, {fl(1/128)}, v11''')
        for rt in range(2):
            S(f'''v_bfe_u32 v4, v0, 1, 3
            v_add_u32 v4, {8*rt}, v4
            v_cvt_f32_u32 v4, v4
            v_mul_f32 v5, {fl(1/16)}, v4           ; +f
            v_mul_f32 v4, {fl(-1/16)}, v4          ; -f
            v_fma_f32 v6, v4, v10, -v7
            v_fma_f32 v8, v5, v11, v7''')
            trig(S,T,4,6,[0,1,2,3]); trig(S,T+8,5,8,[0,1,2,3])
            for ot in range(2):
                for k in range(2):
                    S(f'''v_cvt_pk_bf16_f32 v{T+16+2*ot+k}, v{T+8*ot+2*k}, v{T+8*ot+2*k+1}
                    v_cvt_pk_bf16_f32 v{T+20+2*ot+k}, v{T+8*ot+4+2*k}, v{T+8*ot+4+2*k+1}''')
            for k in range(8): S(f'v_cndmask_b32 v{T+16+k}, 0, v{T+16+k}, s[{64+(k&2)}:{65+(k&2)}]')
            for k in range(4): S(f'v_xor_b32 v{T+24+k}, s62, v{T+20+k}')
            toA(S,A_MI+12*rt,T+16,12)
    if part=='s2':
        S(f'''s_mul_i32 s56, {WV}, 5
        s_cmp_eq_u32 {WV}, 0
        s_cselect_b32 s57, 20, s56
        s_cselect_b32 s58, 0, {fl(0.25)}
        s_cselect_b64 s[60:61], 0, -1
        v_and_b32 v2, 15, v0
        v_lshrrev_b32 v3, 4, v0''')
        S(f'''v_cmp_gt_u32 s[62:63], 8, v2           ; n<8
        v_mul_u32_u24 v4, 40, v2
        v_subrev_u32 v5, 280, v4
        v_subrev_u32 v5, s56, v5
        v_add_u32 v6, s57, v4
        v_add_u32 v4, s56, v4
        v_cndmask_b32 v6, v5, v6, s[62:63]
        v_cndmask_b32 v4, v5, v4, s[62:63]
        v_cndmask_b32 v5, -1.0, 1.0, s[62:63]  ; sign
        v_cvt_f32_u32 v6, v6
        v_cvt_f32_u32 v4, v4
        v_lshrrev_b32 v7, 5, v0
        v_cmp_eq_u32 vcc, 1, v7
        s_xnor_b64 s[64:65], vcc, s[62:63]
        s_or_b64 s[64:65], s[64:65], s[60:61]
        v_cvt_f32_u32 v7, v7
        v_mul_f32_e64 v7, v7, -v5              ; -/+ e
        v_and_b32 v8, 1, v3
        v_lshlrev_b32 v8, 3, v8
        v_cvt_f32_u32 v8, v8                   ; 8*qh''')
        for i in range(5):
            if i: S(f'v_fmamk_f32 v6, v5, {fl(i)}, v4')
            S(f'''v_mul_f32 v9, {fl(-1/640)}, v6
            v_mul_f32 v10, {'s58' if i==0 else fl(0.25)}, v7
            v_fma_f32 v10, v9, v8, v10''')
            trig(S,T,9,10,list(range(8)))
            for k in range(8): S(f'v_cvt_pk_bf16_f32 v{T+16+k}, v{T+2*k}, v{T+2*k+1}')
            if i==0:
                for k in range(8): S(f'v_cndmask_b32 v{T+16+k}, 0, v{T+16+k}, s[64:65]')
            toA(S,A_S2F+8*i,T+16,8)
        S(f'''v_cmp_gt_u32 s[62:63], 2, v3
        v_mul_u32_u24 v4, 160, v3
        v_subrev_u32 v5, 280, v4
        v_subrev_u32 v5, s56, v5
        v_add_u32 v6, s57, v4
        v_add_u32 v4, s56, v4
        v_cndmask_b32 v6, v5, v6, s[62:63]
        v_cndmask_b32 v4, v5, v4, s[62:63]
        v_cndmask_b32 v5, -1.0, 1.0, s[62:63]
        v_cvt_f32_u32 v6, v6
        v_cvt_f32_u32 v4, v4
        v_bfe_u32 v7, v0, 3, 1
        v_cmp_eq_u32 vcc, 1, v7
        s_xnor_b64 s[64:65], vcc, s[62:63]
        s_or_b64 s[64:65], s[64:65], s[60:61]
        v_cvt_f32_u32 v7, v7
        v_mul_f32_e64 v7, v7, -v5
        v_and_b32 v8, 4, v0
        v_and_b32 v9, 3, v0
        v_lshl_add_u32 v8, v8, 1, v9
        v_cvt_f32_u32 v8, v8
        v_mul_f32 v8, {fl(-1/16)}, v8          ; -q/16, mt=0
        v_add_f32 v9, {fl(-0.25)}, v8          ; mt=1''')
        for i in range(5):
            if i: S(f'v_fmamk_f32 v6, v5, {fl(i)}, v4')
            S(f'''v_mul_f32 v11, {fl(1/40)}, v6
            v_mul_f32 v10, {'s58' if i==0 else fl(0.25)}, v7
            v_fma_f32 v12, v9, v11, v10
            v_fma_f32 v10, v8, v11, v10''')
            trig(S,T,8,10,[0,1,2,3]); trig(S,T+8,9,12,[0,1,2,3])
            for k in range(8): S(f'v_cvt_pk_bf16_f32 v{T+16+k}, v{T+2*k}, v{T+2*k+1}')
            if i==0:
                for k in range(8): S(f'v_cndmask_b32 v{T+16+k}, 0, v{T+16+k}, s[64:65]')
            toA(S,A_S2I+8*i,T+16,8)
def gen_R_wload(S,sT):
    S(f'''s_cmp_eq_u32 {sT}, 0
    s_cselect_b32 s56, 64, {sT}
    s_lshl_b32 s57, {WV}, 10
    s_add_u32 s56, s56, s57                ; j of first row (w<2)
    s_sub_u32 s58, 4096, s57
    s_sub_u32 s58, s58, {sT}               ; (w>=2) 2048-(t+128*(8w-16)), mod 2048 below
    s_cmp_lt_u32 {WV}, 2
    s_cselect_b32 s56, s56, s58
    s_cselect_b32 s57, 1, -1
    s_lshl_b32 s57, s57, 7
    s_mul_i32 s59, {WV}, {8*WP}
    s_add_u32 s59, s59, {L_W}
    v_lshlrev_b32 v2, 4, v0
    s_mov_b64 exec, 0x1ffffffffff'''.replace('s_mov_b64 exec, 0x1ffffffffff','s_mov_b32 exec_hi, 0x1ff'))
    for r in range(8):
        S(f'''s_and_b32 s58, s56, 2047
        s_mul_i32 s58, s58, 642
        s_and_b32 s58, s58, -16
        s_add_u32 m0, s59, {r*WP}
        buffer_load_dwordx4 v2, {SA}, s58 offen lds
        s_add_u32 m0, s59, {(32+r)*WP}''')
        S(f'buffer_load_dwordx4 v2, {SB}, s58 offen lds', tok=f'R_w{r}')
        S('s_add_u32 s56, s56, s57')
    S('s_mov_b32 exec_hi, -1')
def gen_R_wgather(S,sT):
    S('s_barrier', need=['R_w7'])
    S(f'''s_mul_i32 s56, {WV}, 5
    s_cmp_eq_u32 {WV}, 0
    s_cselect_b32 s57, 20, s56
    v_and_b32 v2, 15, v0
    v_lshrrev_b32 v3, 4, v0
    v_cmp_gt_u32 vcc, 8, v2
    v_mul_u32_u24 v4, 40, v2
    v_subrev_u32 v5, 280, v4
    v_subrev_u32 v5, s56, v5
    v_add_u32 v6, s57, v4
    v_add_u32 v4, s56, v4
    v_cndmask_b32 v6, v5, v6, vcc
    v_cndmask_b32 v4, v5, v4, vcc
    v_cndmask_b32 v5, -2, 2, vcc
    v_cmp_eq_u32 vcc, 320, v6
    v_cndmask_b32 v9, 1.0, 0.5, vcc
    v_mul_u32_u24 v3, {4*WP}, v3
    v_lshl_add_u32 v6, v6, 1, v3
    v_lshl_add_u32 v4, v4, 1, v3
    s_lshl_b32 s58, {sT}, 1
    s_sub_u32 s59, 0, s58
    s_and_b32 s58, s58, 15
    s_and_b32 s59, s59, 15
    s_add_u32 s58, s58, {L_W}
    s_add_u32 s59, s59, {L_W+16*WP}''')
    for i in range(5):
        if i: S(f'v_add_u32 v4, v4, v5\nv_mov_b32 v6, v4')
        S('v_add_u32 v7, s58, v6\nv_add_u32 v8, s59, v6')
        for ri in range(2):
            for ot in range(2):
                for r in range(4):
                    S(f'ds_read_u16 v{V_W+16*i+8*ri+4*ot+r}, v{7+ot} offset:{(32*ri+r)*WP}')
        for k in range(16):
            S(f'v_lshlrev_b32 v{V_W+16*i+k}, 16, v{V_W+16*i+k}')
            if i==0: S(f'v_mul_f32 v{V_W+k}, v9, v{V_W+k}')
def gen_R_addr(S,sT):
    S(f'''v_lshlrev_b32 v1, 4, v0                ; v1 = lane*16
    s_mul_i32 s74, {WV}, 10240
    s_mul_i32 s75, {sT}, 40960
    s_add_u32 s75, s75, s74
    s_add_u32 s76, s75, {WS_U}
    s_add_u32 s75, s75, {WS_T}
    v_bfe_u32 v10, v0, 2, 2                ; r
    v_lshrrev_b32 v11, 5, v0               ; g>>1 = hf
    v_bfe_u32 v12, v0, 4, 1                ; g&1
    v_and_b32 v13, 1, v0
    v_bfe_u32 v14, v0, 1, 1
    v_lshlrev_b32 v14, 3, v14
    v_mul_u32_u24 v2, 1280, v12
    v_lshl_add_u32 v2, v13, 4, v2
    v_add3_u32 v2, v2, v14, s74
    v_lshl_add_u32 v2, v10, 5, v2
    v_lshl_add_u32 v3, v11, 7, v2          ; v3: t=2
    v_lshl_add_u32 v2, v11, 8, v2          ; v2: t<2
    s_lshl_b32 s56, {WV}, 7
    s_add_u32 s56, s56, {L_E}
    v_mul_u32_u24 v8, 544, v13
    v_lshl_add_u32 v8, v12, 4, v8
    v_add3_u32 v8, v8, v14, s56
    v_lshl_add_u32 v9, v11, 2, v10
    v_lshl_add_u32 v10, v11, 3, v10
    v_mul_u32_u24 v9, 1088, v9
    v_mul_u32_u24 v10, 1088, v10
    v_add_u32 v9, v9, v8                   ; v9: t=2
    v_add_u32 v8, v10, v8                  ; v8: t<2
    ; E1 write
    v_and_b32 v10, 31, v0
    v_mul_u32_u24 v4, 1040, v10
    v_lshl_add_u32 v13, v11, 9, s56
    v_add_u32 v4, v4, v13                  ; v4 main
    v_and_b32 v14, 7, v0
    v_mul_u32_u24 v5, 1040, v14
    v_bfe_u32 v15, v0, 3, 2
    v_lshl_add_u32 v5, v15, 5, v5
    v_add_u32 v5, v5, v13
    v_lshlrev_b32 v13, 4, v11
    v_lshl_add_u32 v14, v14, 5, v13
    v_mul_u32_u24 v15, 2560, v15
    v_add_u32 v15, v15, v14
    v_lshl_add_u32 v14, v10, 5, v13        ; v14 main
    v_and_b32 v10, 15, v0
    v_lshlrev_b32 v10, 4, v10
    s_mul_i32 s56, {WV}, {5*2080}
    s_add_u32 s56, s56, {L_E}
    v_mul_u32_u24 v6, 1040, v11
    v_lshl_add_u32 v6, v12, 9, v6
    v_add3_u32 v6, v6, v10, s56            ; v6
    s_mul_i32 s56, {WV}, {10*1088}
    s_add_u32 s56, s56, {L_E}
    v_lshrrev_b32 v7, 4, v0
    v_mul_u32_u24 v7, 544, v7
    v_add3_u32 v7, v7, v10, s56            ; v7''')
def stage1(S, va, vb, strides, aM, aX, emit):
    ps,ks=strides
    FR=96; ACC=16
    for pr in range(4):
        f=FR+12*pr
        S(f'v_mov_b32 v{f+10}, 0\nv_mov_b32 v{f+11}, 0')
        for t in range(2):
            for u in range(2): S(f'ds_read_b64_tr_b16 v[{f+4*t+2*u}:{f+4*t+2*u+1}], v{va} offset:{pr*ps+(4*t+u)*ks}')
        S(f'ds_read_b64_tr_b16 v[{f+8}:{f+9}], v{vb} offset:{pr*ps+8*ks}')
    for pr in range(4):
        f=FR+12*pr; c=ACC+16*pr; m=ACC+64
        for t in range(3):
            S(f'v_mfma_f32_32x32x16_bf16 v[{m}:{m+15}], v[{f+4*t}:{f+4*t+3}], a[{aX+12*pr+4*t}:{aX+12*pr+4*t+3}], '+('0' if pr==0 and t==0 else f'v[{m}:{m+15}]'))
        for t in range(3):
            S(f'v_mfma_f32_32x32x16_bf16 v[{c}:{c+15}], v[{f+4*t}:{f+4*t+3}], a[{aM+4*t}:{aM+4*t+3}], '+('0' if t==0 else f'v[{c}:{c+15}]'))
    for tile in (0,1,2,4,3):
        c=ACC+16*tile
        for k in range(8): S(f'v_cvt_pk_bf16_f32 v{c+k}, v{c+2*k}, v{c+2*k+1}')
        emit(tile,c)
def gen_R_main(S,sT):
    S(f's_mov_b32 m0, s74')
    for i in range(10):
        if i in(4,8): S(f's_add_u32 m0, s74, {i*1024}\ns_add_u32 s75, s75, 4096')
        S(f'buffer_load_dwordx4 v1, {SW}, s75 offen offset:{(i&3)*1024} sc1 lds', tok=f'R_t{i}')
    S.wait('R_t9')
    def e1(tile,c):
        for row in range(2):
            if tile<4: S(f'ds_write_b128 v4, v[{c+4*row}:{c+4*row+3}] offset:{(2*tile+row)*16}', tok=f'R_e1_{tile}{row}')
            else: S(f'ds_write_b128 v5, v[{c+4*row}:{c+4*row+3}] offset:{32*1040+row*16}', tok=f'R_e1_{tile}{row}')
    stage1(S,2,3,(2560,128),A_S1F,A_S1FM,e1)
    S('s_barrier', need=['R_e1_31'])
    M16='v_mfma_f32_16x16x32_bf16'
    q=lambda b,k='v': f'{k}[{b}:{b+3}]'
    for i in range(5):
        B=16+32*i
        for rt in range(2): S(f'ds_read_b128 {q(B+4*rt)}, v6 offset:{i*2080+rt*256}', tok=f'R_r{i}{rt}')
    S('s_barrier', need=['R_r41'])
    for i in range(5):
        B=16+32*i; P=B; P2=B+8; C=B+16; W=V_W+16*i
        for ri in range(2):
            for rt in range(2): S(f'{M16} {q(C+8*ri+4*rt)}, {q(P+4*rt)}, {q(A_S2F+8*i+4*ri,"a")}, 0')
        for k in range(8): S(f'v_cvt_pk_bf16_f32 v{P2+k}, v{C+2*k}, v{C+2*k+1}')
        for ot in range(2):
            a=A_MF+12*ot
            S(f'{M16} {q(C+4*ot)}, {q(a,"a")}, {q(P2)}, 0\n{M16} {q(C+8+4*ot)}, {q(a+4,"a")}, {q(P2)}, 0')
        for ot in range(2):
            a=A_MF+12*ot
            S(f'{M16} {q(C+4*ot)}, {q(a+8,"a")}, {q(P2+4)}, {q(C+4*ot)}\n{M16} {q(C+8+4*ot)}, {q(a,"a")}, {q(P2+4)}, {q(C+8+4*ot)}')
        for k in range(8):
            S(f'v_mul_f32 v{P+k}, v{C+k}, v{W+k}\nv_mul_f32 v{C+k}, v{C+k}, v{W+8+k}')
        for k in range(8):
            S(f'v_fma_f32 v{P+k}, -v{C+8+k}, v{W+8+k}, v{P+k}\nv_fmac_f32 v{C+k}, v{C+8+k}, v{W+k}')
        for k in range(4):
            S(f'v_cvt_pk_bf16_f32 v{P2+k}, v{P+2*k}, v{P+2*k+1}\nv_cvt_pk_bf16_f32 v{P2+4+k}, v{C+2*k}, v{C+2*k+1}')
        for rt in range(2):
            a=A_MI+12*rt
            S(f'{M16} {q(C+8*rt)}, {q(P2)}, {q(a,"a")}, 0\n{M16} {q(C+8*rt+4)}, {q(P2)}, {q(a+8,"a")}, 0')
        for rt in range(2):
            a=A_MI+12*rt
            S(f'{M16} {q(C+8*rt)}, {q(P2+4)}, {q(a+4,"a")}, {q(C+8*rt)}\n{M16} {q(C+8*rt+4)}, {q(P2+4)}, {q(a,"a")}, {q(C+8*rt+4)}')
        for k in range(8): S(f'v_cvt_pk_bf16_f32 v{P+k}, v{C+2*k}, v{C+2*k+1}')
        for rt in range(2):
            for mt in range(2): S(f'{M16} {q(C+8*rt+4*mt)}, {q(A_S2I+8*i+4*mt,"a")}, {q(P+4*rt)}, 0')
        for k in range(8): S(f'v_cvt_pk_bf16_f32 v{P2+k}, v{C+2*k}, v{C+2*k+1}')
        for rt in range(2): S(f'ds_write_b128 v7, {q(P2+4*rt)} offset:{i*2176+rt*256}', tok=f'R_e2_{i}{rt}')
    S('s_barrier', need=['R_e2_41'])
    def st(tile,c):
        for row in range(2):
            if tile<4:
                S(f's_add_u32 s56, s76, {(2*tile+row)*1280}')
                S(f'buffer_store_dwordx4 v[{c+4*row}:{c+4*row+3}], v14, {SW}, s56 offen sc1', tok=f'R_o{tile}{row}')
            else: S(f'buffer_store_dwordx4 v[{c+4*row}:{c+4*row+3}], v15, {SW}, s76 offen offset:{1024+row*1280} sc1', tok=f'R_o{tile}{row}')
    stage1(S,8,9,(32,4*1088),A_S1I,A_S1IM,st)
def gen_R(S,sT):
    gen_R_wload(S,sT)
    for p in('s1','m','s2'): gen_R_consts(S,sT,p)
    gen_R_wgather(S,sT); gen_R_addr(S,sT); gen_R_main(S,sT)
```

```python
import re
REG = re.compile(r'^(-|\|)?(abs\()?([vas])(\d+|\[(\d+):(\d+)\])\)?\|?$')
def regs_of(op):
    op=op.strip()
    if op in('vcc',): return {('s','vcc')}
    if op in('vcc_lo','vcc_hi'): return {('s','vcc')}
    if op in('exec','exec_lo','exec_hi'): return {('s','exec')}
    if op=='m0': return {('s','m0')}
    m=REG.match(op)
    if not m: return set()
    k=m.group(3)
    if m.group(5) is not None: return {(k,i) for i in range(int(m.group(5)),int(m.group(6))+1)}
    return {(k,int(m.group(4)))}
TRANS=('v_exp_f32','v_log_f32','v_rcp_f32','v_rsq_f32','v_sqrt_f32','v_sin_f32','v_cos_f32')
class Ins:
    __slots__=('text','mn','ops','mods','rd','wr','tok','need','cls','passes','srcc','srcab','raw','nowait')
    def __init__(s,text,tok=None,need=None,raw=False,nowait=False):
        s.text=text; s.tok=tok; s.need=list(need) if need else []; s.raw=raw; s.nowait=nowait
        s.rd=set(); s.wr=set(); s.cls='x'; s.passes=0; s.srcc=set(); s.srcab=set(); s.mn=''; s.ops=[]; s.mods=''
        if raw: s.cls='raw'; return
        t=text.split(';')[0].strip()
        p=t.split(None,1); s.mn=mn=p[0]
        rest=p[1] if len(p)>1 else ''
        parts=[x.strip() for x in re.split(r',(?![^\[]*\])',rest)] if rest else []
        if parts:
            last=parts[-1].split(None,1)
            parts[-1]=last[0]; s.mods=last[1] if len(last)>1 else ''
        s.ops=ops=parts
        R=[regs_of(o) for o in ops]
        U=lambda l: set().union(*l) if l else set()
        base=re.sub(r'_(e32|e64|dpp|sdwa)$','',mn)
        mods=s.mods.split()
        if mn.startswith('v_mfma'):
            s.cls='mfma'; s.wr=R[0]; s.srcab=R[1]|R[2]; s.srcc=R[3]; s.rd=s.srcab|s.srcc
            s.passes=8 if '32x32x16' in mn else 4 if '16x16x32' in mn else None
            assert s.passes
        elif mn.startswith('v_'):
            s.cls='valu'
            if base.startswith('v_permlane') or base=='v_swap_b32': s.wr=R[0]|R[1]; s.rd=R[0]|R[1]
            elif base in('v_add_co_u32','v_sub_co_u32','v_addc_co_u32'): s.wr=R[0]|R[1]; s.rd=U(R[2:])
            elif base=='v_nop': pass
            else:
                s.wr=R[0]; s.rd=U(R[1:])
                if base.startswith(('v_fmac','v_dot2c','v_pk_fmac','v_writelane')) or mn.endswith(('_dpp','_sdwa')): s.rd|=R[0]
                if base.startswith('v_cmpx'): s.wr|={('s','exec')}
        elif mn.startswith('ds_'):
            s.cls='ds'
            if mn.startswith(('ds_read','ds_bpermute','ds_permute','ds_swizzle')):
                s.wr=R[0]; s.rd=U(R[1:])
                if 'd16' in mn: s.rd|=R[0]
            else: s.rd=U(R)
        elif mn.startswith(('buffer_','global_')):
            s.cls='vm'
            if mn.startswith(('buffer_inv','buffer_wbl2')): pass
            elif 'lds' in mods or '_lds_' in mn: s.rd=U(R)|{('s','m0')}
            elif 'load' in mn:
                s.wr=R[0]; s.rd=U(R[1:])
                if 'd16' in mn: s.rd|=R[0]
            elif 'atomic' in mn and 'sc0' in mods: s.wr=R[0]; s.rd=U(R)
            else: s.rd=U(R)
        elif mn.startswith(('s_load','s_memtime','s_memrealtime')):
            s.cls='smem'; s.wr=R[0]; s.rd=U(R[1:])
        elif mn.startswith('s_'):
            s.cls='salu'
            if mn.startswith(('s_cmp','s_waitcnt','s_barrier','s_nop','s_branch','s_cbranch','s_setprio','s_sleep','s_endpgm','s_bitcmp','s_setpc')):
                s.rd=U(R)
            else:
                s.wr=R[0]; s.rd=U(R[1:])
                if 'saveexec' in mn: s.wr|={('s','exec')}
                if mn.startswith(('s_addk','s_mulk','s_cmov','s_bitset')): s.rd|=R[0]
        else: raise ValueError('unknown instr '+text)
    def base(s): return re.sub(r'_(e32|e64|dpp|sdwa)$','',s.mn)
    def __repr__(s): return s.text

def I(text,**kw): return Ins(text,**kw)
class Stream(list):
    def __call__(s,text,**kw):
        for l in text.split('\n'):
            l=l.strip()
            if not l or l.startswith(';'): continue
            if l.endswith(':') or l.startswith('.'): s.append(Ins(l,raw=True))
            else: s.append(Ins(l,**kw))
        return s
    def wait(s,*toks):
        i=Ins('; wait '+' '.join(map(str,toks)),raw=True); i.need=list(toks); s.append(i); return s
    def reset(s):
        s.append(Ins('; RESET',raw=True)); return s

def weave(main, fills, start=0, end=None):
    end=len(main) if end is None else end
    n=end-start; k=0
    for i in range(n):
        upto=len(fills)*(i+1)//n
        while k<upto:
            f=fills[k]; k+=1
            if isinstance(f,(list,tuple)): main[start+i].extend(f)
            else: main[start+i].append(f)
def flat(groups):
    o=Stream()
    for g in groups: o.extend(g)
    return o

def insert_waits(prog):
    out=[]; vm=[]; lg=[]; done=set(); smem_out=False
    known=set(i.tok for i in prog if i.tok is not None)
    def retire(q,n):
        while len(q)>n:
            e=q.pop(0)
            if e.tok is not None: done.add(e.tok)
    for ins in prog:
        if ins.raw and ins.text=='; RESET':
            retire(vm,0); retire(lg,0); out.append(ins); continue
        if ins.mn=='s_waitcnt':
            m=re.search(r'vmcnt\((\d+)\)',ins.text)
            if m: retire(vm,int(m.group(1)))
            m=re.search(r'lgkmcnt\((\d+)\)',ins.text)
            if m:
                n=int(m.group(1))
                if n==0 or not any(e.cls=='smem' for e in lg): retire(lg,n)
            out.append(ins); continue
        touch=ins.rd|ins.wr
        nv=nl=None
        for t in ins.need: assert t in known, f'unknown token {t}'
        for q,isv in((vm,1),(lg,0)):
            last=-1
            for j,e in enumerate(q):
                if (e.wr & touch and not ins.nowait) or (e.tok is not None and e.tok in ins.need): last=j
            if last>=0:
                n=len(q)-1-last
                if not isv and any(e.cls=='smem' for e in q): n=0
                if isv: nv=min(n,63)
                else: nl=min(n,15)
        if nv is not None or nl is not None:
            w='s_waitcnt'
            if nv is not None: w+=f' vmcnt({nv})'; retire(vm,nv)
            if nl is not None: w+=f' lgkmcnt({nl})'; retire(lg,nl)
            out.append(Ins(w))
        if ins.cls=='vm': vm.append(ins)
        elif ins.cls in('ds','smem'): lg.append(ins)
        out.append(ins)
    return out

def states(i):
    if i.raw: return 0
    if i.mn=='s_nop': return int(i.ops[0],0)+1
    return 1
def need_states(p,c):
    n=0
    isv=lambda S:{r for r in S if r[0] in 'va'}
    iss=lambda S:{r for r in S if r[0]=='s'}
    pb,cb=p.base(),c.base()
    if p.cls=='valu':
        w=isv(p.wr); sw=iss(p.wr)
        dot=pb.startswith('v_dot')
        if c.cls=='mfma' and w&c.rd: n=max(n,3 if dot else 2)
        if c.cls=='valu':
            if pb in TRANS and w&c.rd and cb not in TRANS: n=max(n,1)
            if w&c.rd:
                if cb in('v_readlane_b32','v_readfirstlane_b32'): n=max(n,1)
                if c.mn.endswith('_dpp') or cb.startswith('v_permlane'): n=max(n,2)
            if (p.mn.endswith('_sdwa') or 'op_sel' in p.mods) and w&(c.rd|c.wr): n=max(n,1)
            if sw&c.rd: n=max(n,4 if cb in('v_readlane_b32','v_writelane_b32') else 2)
            if ('s','vcc') in sw and cb=='v_div_fmas_f32': n=max(n,4)
            if ('s','exec') in sw: n=max(n,5)
        if dot and w&(c.rd|c.wr):
            same = cb==pb and not (w & set().union(*[regs_of(o) for o in c.ops[1:3]]))
            if not same: n=max(n,3)
        if c.cls=='vm' and sw&c.rd: n=max(n,5)
        if c.cls=='mfma' and ('s','exec') in sw: n=max(n,4)
    if p.cls=='mfma':
        P=p.passes
        if c.cls=='mfma':
            if p.wr&c.srcab: n=max(n,P+4)
            if p.wr&c.srcc and not (p.wr==c.srcc and c.passes==P): n=max(n,P+2)
            if p.wr&c.wr and not (p.wr==c.wr and c.passes==P): n=max(n,P+2)
        elif c.cls in('valu','vm','ds'):
            if p.wr&(c.rd|c.wr): n=max(n,P+4)
            if c.cls=='valu' and p.srcc&c.wr: n=max(n,P-1)
    if p.cls=='salu' and ('s','m0') in p.wr and ('s','m0') in c.rd and c.cls in('vm','ds'): n=max(n,1)
    if p.cls=='vm' and ('store' in p.mn) and ('x4' in p.mn or 'x3' in p.mn):
        data=regs_of(p.ops[0]) if p.mn.startswith('buffer') else regs_of(p.ops[1])
        if data&c.wr: n=max(n,2)
    return n
def insert_nops(prog):
    out=[]; nn=0
    for ins in prog:
        if ins.raw: out.append(ins); continue
        dist=0; pad=0
        for p in reversed(out):
            if dist>=20: break
            if p.raw:
                if p.text=='; RESET': break
                continue
            pad=max(pad,need_states(p,ins)-dist)
            dist+=states(p)
        if pad>0:
            out.append(Ins(f's_nop {pad-1}')); nn+=pad
        out.append(ins)
    return out
def finalize(prog):
    return insert_nops(insert_waits(prog))
def text(prog):
    return '\n'.join((i.text if i.raw else '    '+i.text) for i in prog if not (i.raw and i.text.startswith('; ')))+'\n'
def stats(prog):
    from collections import Counter
    c=Counter()
    for i in prog:
        if i.raw: continue
        k=i.cls
        if i.mn=='s_nop': c['nopstates']+=states(i); k='nop'
        if i.mn=='s_waitcnt': k='wait'
        c[k]+=1
    return dict(c)
def vr(a,n=1,k='v'): return f'{k}{a}' if n==1 else f'{k}[{a}:{a+n-1}]'
class RegAlloc:
    def __init__(s,k,lo,hi): s.k=k; s.p=lo; s.hi=hi; s.names={}
    def get(s,n=1,al=None,name=None):
        al=al or (2 if n>1 else 1)
        s.p=(s.p+al-1)//al*al; a=s.p; s.p+=n
        assert s.p<=s.hi, f'out of {s.k} regs'
        return a
```

```python
import sys
from common import *
from k_f import gen_F
parts=sys.argv[2].split(',') if len(sys.argv)>2 else ['f','r','g1','g2']
hdr='';body=''
def kernel(name,nwg,fn):
    global hdr,body
    hdr+=f'; @launch kernel={name} grid=({nwg},1,1) block=(256,1,1) lds=163840\n'
    S=Stream(); prologue(S,nwg,f'L_end_{name}'); fn(S)
    S(f'L_end_{name}:\ns_endpgm')
    P=finalize(S); print(name,stats(P),file=sys.stderr)
    body+=kstart(name)+text(P)+kd(name)
def spec_ids(S):
    S('''s_and_b32 s56, s2, 1
    s_lshl_b32 s56, s56, 3
    s_and_b32 s57, s2, 6
    s_add_u32 s56, s56, s57
    s_lshr_b32 s57, s2, 5
    s_add_u32 s33, s56, s57
    s_bfe_u32 s34, s2, 0x20003''')
if 'f' in parts: kernel('f_kernel',64,lambda S:(spec_ids(S),gen_F(S)))
if 'r' in parts:
    from k_r import gen_R
    kernel('r_kernel',64,lambda S:(srd_spec(S),gen_R(S,'s2')))
if 'g1' in parts:
    from k_g import gen_G1, g_ids
    kernel('g1_kernel',192,lambda S:(srd_ffn(S),g_ids(S,0),gen_G1(S)))
if 'g2' in parts:
    from k_g import gen_G2, g_ids
    kernel('g2_kernel',192,lambda S:(g_ids(S,0),gen_G2(S,'L_end_g2_kernel')))
open(sys.argv[1],'w').write(hdr+HEAD+body)
```

```python
import struct
from kasm import *
NAME="recurrent_scan__spectral_gfnet__geglu_ffn__prompt"
WS_T=0x000000; WS_U=0x300000; WS_H=0x600000; WS_FL=0xC00000; WS_DBG=0xD00000; WS_SIZE=0x1000000
def fl(x): return '0x%08x'%struct.unpack('<I',struct.pack('<f',x))[0]
SX,SW,SA,SB,SD,SO,SG='s[4:7]','s[8:11]','s[12:15]','s[16:19]','s[20:23]','s[24:27]','s[28:31]'
WV='s32'
def srd(S,base,ptr,size):
    S(f'''s_mov_b32 s{base}, s{ptr}
    s_mov_b32 s{base+1}, s{ptr+1}
    s_mov_b32 s{base+2}, {size}
    s_mov_b32 s{base+3}, 0x20000''')
def prologue(S,nwg,endl):
    stamp(S,0)
    S(f'''s_load_dwordx16 s[36:51], s[0:1], 0
    s_load_dwordx4 s[52:55], s[0:1], 64
    s_cmp_ge_u32 s2, {nwg}
    s_cbranch_scc1 {endl}
    v_lshrrev_b32 v1, 6, v0
    v_and_b32 v0, 63, v0
    v_readfirstlane_b32 {WV}, v1
    s_waitcnt lgkmcnt(0)''')
    srd(S,4,36,2048*640*2); srd(S,8,54,WS_SIZE); srd(S,24,50,2048*640*2); srd(S,28,52,256); srd(S,20,48,1536*640*2)
def srd_spec(S): srd(S,12,38,2048*321*2); srd(S,16,40,2048*321*2)
def srd_ffn(S): srd(S,12,44,640*1536*2); srd(S,16,46,640*1536*2)
HEAD='.amdgcn_target "amdgcn-amd-amdhsa--gfx950"\n.text\n'
def kstart(name): return f".text\n.globl {name}\n.p2align 8\n.type {name},@function\n{name}:\n"
def kd(name, vg=512, acc=256, sg=102):
    return f""".section .rodata,"a"
.p2align 6
.amdhsa_kernel {name}
  .amdhsa_next_free_vgpr {vg}
  .amdhsa_next_free_sgpr {sg}
  .amdhsa_accum_offset {acc}
  .amdhsa_group_segment_fixed_size 0
  .amdhsa_kernarg_size 80
  .amdhsa_user_sgpr_count 2
  .amdhsa_user_sgpr_kernarg_segment_ptr 1
  .amdhsa_system_sgpr_workgroup_id_x 1
.end_amdhsa_kernel
.text
"""
def gen_cos_frag(S, dst, vf, vph, mults, tmp, dstk='a', neg=False, mask=None):
    for i,m in enumerate(mults):
        if m==0: S(f'v_cos_f32 v{tmp+i}, v{vph}')
        else:
            S(f'v_fmamk_f32 v{tmp+i}, v{vf}, {fl(m)}, v{vph}')
    for i,m in enumerate(mults):
        if m!=0: S(f'v_cos_f32 v{tmp+i}, v{tmp+i}')
    for i in range(4):
        d = dst+i if dstk=='v' else tmp+2*i
        S(f'v_cvt_pk_bf16_f32 v{d}, v{tmp+2*i}, v{tmp+2*i+1}')
        if mask is not None: S(f'v_and_b32 v{d}, v{mask}, v{d}')
    if dstk=='a':
        for i in range(4): S(f'v_accvgpr_write_b32 a{dst+i}, v{tmp+2*i}')

PROF=[False]
STR=[94,96,98,100,36,38,40,42,44,46,48,50,52,54]
def stamp(S,i):
    if PROF[0]: S(f'{PROF[0]} s[{STR[i]}:{STR[i]+1}]')
def stampI(i): return [I(f'{PROF[0]} s[{STR[i]}:{STR[i]+1}]')] if PROF[0] else []
def prof_dump(S,slot,lab):
    if not PROF[0]: return
    S('s_waitcnt vmcnt(0)'); stamp(S,13)
    S(f"""s_waitcnt lgkmcnt(0)
    s_cmp_lg_u32 {WV}, 0
    s_cbranch_scc1 {lab}""")
    for i,r in enumerate(STR): S(f'v_writelane_b32 v1, s{r}, {i}')
    S(f"""s_lshl_b32 s56, s2, 6
    s_add_u32 s56, s56, {WS_DBG+slot*16384}
    v_lshlrev_b32 v2, 2, v0
    s_mov_b64 exec, 0x3fff
    buffer_store_dword v1, v2, {SW}, s56 offen""")

SLOW=Stream()
SPIN=20000
HUGE=0x7f000000
def check(name, load, test):
    s=Stream(); s(test); s(f's_cbranch_vccnz L_slow_{name}'); s(f'L_back_{name}:')
    SLOW.reset()
    SLOW(f'L_slow_{name}:\ns_mov_b32 s93, 0\nL_spin_{name}:'); SLOW(load); SLOW('s_waitcnt vmcnt(0)'); SLOW(test)
    SLOW(f"""s_nop 1
    s_cbranch_vccz L_back_{name}
    s_add_u32 s93, s93, 1
    s_cmp_lt_u32 s93, {SPIN}
    s_cbranch_scc1 L_spin_{name}
    s_branch L_back_{name}""")
    return s
def code_touch(S, lab, nbytes, vt):
    n=(nbytes+32767)//32768
    S(f"""s_getpc_b64 s[56:57]
    L_pc_{lab}:
    s_lshl_b32 s58, {WV}, 6
    v_add_u32 v{vt}, s58, v0
    v_lshlrev_b32 v{vt}, 7, v{vt}
    v_min_u32 v{vt}, {lab}_end-L_pc_{lab}-4, v{vt}
    v_mov_b32 v{vt+1}, s57
    v_add_co_u32 v{vt}, vcc, s56, v{vt}
    v_addc_co_u32 v{vt+1}, vcc, 0, v{vt+1}, vcc
    global_load_dword v{vt+2}, v[{vt}:{vt+1}], off""")
```

```python
from common import *
def gen_F(S, sB='s33', sC='s34', mega=False):
    RAW=96; ACC=16; GF=0; AF=32
    LX=0; LO=40960
    if mega:
        S(f'''s_lshl_b32 s78, {sB}, 2
        s_add_u32 s78, s78, {sC}
        s_lshl_b32 s78, s78, 10
        s_add_u32 s78, s78, {WS_FL}
        s_cmp_eq_u32 {WV}, 0
        s_cselect_b32 s79, 0, {HUGE}
        v_lshl_add_u32 v2, v0, 4, s79
        v_mov_b32 v12, 0
        v_mov_b32 v13, 0
        v_mov_b32 v14, 0
        v_mov_b32 v15, 0''')
        S(f'buffer_store_dwordx4 v[12:15], v2, {SW}, s78 offen sc1', tok='F_clr')
    S(f'''v_lshrrev_b32 v2, 3, v0
    v_and_b32 v3, 7, v0
    s_mov_b32 s56, 20480
    v_mul_lo_u32 v4, v2, s56
    v_lshl_add_u32 v5, v3, 3, v4           ; x2 voffset
    v_lshl_add_u32 v4, v3, 4, v4           ; x4 voffset
    s_mul_i32 s57, {WV}, {8*20480}
    s_mul_i32 s58, {sB}, 1280
    s_add_u32 s57, s57, s58''')
    for i in range(4):
        S(f'''s_add_u32 s58, {sC}, {i}
        s_and_b32 s58, s58, 3
        s_mul_i32 s{60+i}, s58, 320
        s_lshl_b32 s{68+i}, s58, 5           ; chunk*32
        s_mul_i32 s{64+i}, s58, {32*20480}
        s_add_u32 s{64+i}, s{64+i}, s57''')
    for i in range(4):
        for qi in (1,2,3,0):
            r=RAW+40*i+10*qi
            S(f'''s_add_u32 s58, s{64+i}, s{60+qi}
            buffer_load_dwordx4 v[{r}:{r+3}], v4, {SX}, s58 offen
            buffer_load_dwordx4 v[{r+4}:{r+7}], v4, {SX}, s58 offen offset:128
            buffer_load_dwordx2 v[{r+8}:{r+9}], v5, {SX}, s58 offen offset:256''')
    S(f'''v_and_b32 v6, 31, v0
    s_lshl_b32 s58, {WV}, 5
    v_add_u32 v6, s58, v6                  ; jr
    v_lshrrev_b32 v7, 1, v6
    v_cmp_eq_u32 vcc, 1, v6
    v_and_b32 v8, 1, v6
    v_cndmask_b32 v7, v7, 64, vcc
    v_cndmask_b32 v8, v8, 0, vcc
    v_cvt_f32_u32 v7, v7
    v_cvt_f32_u32 v8, v8
    v_mul_f32 v7, {fl(1/128)}, v7          ; f
    v_mul_f32 v8, {fl(-0.25)}, v8          ; phi
    v_lshrrev_b32 v9, 5, v0
    v_lshlrev_b32 v9, 3, v9''')
    for i in range(4):
        S(f'''v_add_u32 v10, s{68+i}, v9
        v_cvt_f32_u32 v10, v10
        v_fma_f32 v10, v7, v10, v8''')
        for tt in range(2):
            gen_cos_frag(S, GF+8*i+4*tt, 7, 10, [16*tt+k for k in range(8)], ACC)
    S(f'''s_lshl_b32 s58, {WV}, 3
    v_add_u32 v6, s58, v2
    v_mul_u32_u24 v6, 320, v6
    v_lshl_add_u32 v7, v3, 3, v6
    v_lshl_add_u32 v6, v3, 4, v6
    v_bfe_u32 v8, v0, 2, 2                 ; r
    v_add_u32 v8, v8, v9                   ; + 8*(g>>1)
    v_mul_u32_u24 v8, 320, v8
    v_bfe_u32 v10, v0, 4, 1
    v_lshl_add_u32 v8, v10, 5, v8
    v_and_b32 v10, 1, v0
    v_lshl_add_u32 v8, v10, 4, v8
    v_bfe_u32 v10, v0, 1, 1
    v_lshl_add_u32 v8, v10, 3, v8
    s_mov_b32 s59, 0x3f803f80
    s_mov_b32 s72, 0xffff0000''')
    S(f'''s_lshl_b32 s58, {sB}, 2
    s_add_u32 s58, s58, {sC}
    s_lshl_b32 s58, s58, 4
    s_add_u32 s58, s58, {WV}
    s_lshl_b32 s58, s58, 6
    s_add_u32 s73, s58, {WS_FL}
    v_lshlrev_b32 v9, 3, v2
    v_lshl_add_u32 v9, v3, 28, v9''')
    stamp(S,2)
    for i in range(4):
        R=RAW+40*i
        S('v_mov_b32 v10, 0\nv_mov_b32 v11, 0\nv_mov_b32 v12, 0\nv_mov_b32 v13, 0')
        if mega and i==0:
            S(f'''v_lshlrev_b32 v14, 24, v0
            v_add_u32 v14, s79, v14
            v_mov_b32 v15, 1
            s_and_b32 s58, s2, 1
            s_lshl_b32 s58, s58, 7''')
            S(f'buffer_atomic_add v15, v14, {SG}, s58 offen sc1', need=['F_clr'])
        order=[10*qi+k for qi in (1,2,3,0) for k in range(10)]
        for n,k in enumerate(order):
            S(f'v_dot2c_f32_bf16 v{10+2*(n&1)}, s59, v{R+k}\nv_dot2c_f32_bf16 v{11+2*(n&1)}, v{R+k}, v{R+k}')
        if i==0: stamp(S,3)
        T=R+10
        for k in range(10):
            S(f'v_lshlrev_b32 v{T+2*k}, 16, v{R+k}\nv_and_b32 v{T+2*k+1}, s72, v{R+k}')
        S('v_add_f32 v10, v10, v12\nv_add_f32 v11, v11, v13')
        for dpp in ('quad_perm:[1,0,3,2]','quad_perm:[2,3,0,1]','row_half_mirror'):
            S(f'v_add_f32_dpp v10, v10, v10 {dpp} row_mask:0xf bank_mask:0xf\nv_add_f32_dpp v11, v11, v11 {dpp} row_mask:0xf bank_mask:0xf')
        S(f'''v_mul_f32 v10, {fl(1/640)}, v10        ; mean
        v_mul_f32 v12, v10, v10
        v_mul_f32 v11, {fl(1/640)}, v11
        v_sub_f32 v11, v11, v12
        v_max_f32 v11, 0, v11
        v_add_f32 v11, {fl(1e-5)}, v11
        v_rsq_f32 v11, v11
        v_mul_f32_e64 v12, -v10, v11''')
        for k in range(10):
            S(f'v_pk_fma_f32 v[{T+2*k}:{T+2*k+1}], v[{T+2*k}:{T+2*k+1}], v[10:11], v[12:13] op_sel:[0,1,0] op_sel_hi:[1,1,0]')
        for k in range(10):
            S(f'v_cvt_pk_bf16_f32 v{R+k}, v{T+2*k}, v{T+2*k+1}')
        o=LX+i*32*320
        S(f'''ds_write_b128 v6, v[{R}:{R+3}] offset:{o}
        ds_write_b128 v6, v[{R+4}:{R+7}] offset:{o+128}''')
        S(f'ds_write_b64 v7, v[{R+8}:{R+9}] offset:{o+256}', tok=f'F_w{i}')
        S('s_barrier', need=[f'F_w{i}'])
        if not mega: stamp(S,4+i)
        if i==0: S(f'buffer_store_dwordx2 v[10:11], v9, {SW}, s73 offen sc1', tok='F_st')
        for t in range(5):
            for tt in range(2):
                a=AF+8*t+4*tt
                for u in range(2):
                    S(f'ds_read_b64_tr_b16 a[{a+2*u}:{a+2*u+1}], v8 offset:{o+(16*tt+4*u)*320+64*t}')
        for t in range(5):
            for tt in range(2):
                a=AF+8*t+4*tt; g=GF+8*i+4*tt; c=ACC+16*t
                S(f'v_mfma_f32_32x32x16_bf16 v[{c}:{c+15}], a[{a}:{a+3}], a[{g}:{g+3}], '+('0' if i==0 and tt==0 else f'v[{c}:{c+15}]'))
    if not mega: stamp(S,8)
    S(f'''s_mul_i32 s58, {WV}, 10240
    s_add_u32 s58, s58, {LO}
    v_and_b32 v2, 31, v0
    v_lshrrev_b32 v3, 5, v0
    v_bfe_u32 v4, v0, 1, 2
    v_xor_b32 v3, v3, v4
    v_lshlrev_b32 v3, 4, v3
    v_lshl_add_u32 v2, v2, 6, v3
    v_add_u32 v2, s58, v2
    v_xor_b32 v3, 32, v2
    v_lshl_add_u32 v4, v0, 4, s58
    v_lshrrev_b32 v5, 3, v0
    v_and_b32 v6, 3, v5
    v_and_b32 v7, 3, v0
    v_xor_b32 v6, v6, v7
    v_lshlrev_b32 v6, 4, v6
    s_mov_b32 s56, 40960
    v_mul_lo_u32 v5, v5, s56
    v_bfe_u32 v7, v0, 2, 1
    v_mul_u32_u24 v7, 1280, v7
    v_add3_u32 v5, v5, v6, v7
    s_mul_i32 s56, {WV}, {16*40960}
    s_mul_i32 s57, {sB}, 2560
    s_add_u32 s56, s56, s57
    s_add_u32 s56, s56, s60
    s_add_u32 s56, s56, {WS_T}
    s_add_u32 s57, s56, {8*40960}''')
    for t in range(5):
        c=ACC+16*t; P=RAW+8*t
        for k in range(8): S(f'v_cvt_pk_bf16_f32 v{P+k}, v{c+2*k}, v{c+2*k+1}')
        S(f'ds_write_b128 v2, v[{P}:{P+3}] offset:{2048*t}')
        S(f'ds_write_b128 v3, v[{P+4}:{P+7}] offset:{2048*t}')
    for t in range(5):
        P=RAW+40+8*t
        S(f'ds_read_b128 v[{P}:{P+3}], v4 offset:{2048*t}\nds_read_b128 v[{P+4}:{P+7}], v4 offset:{2048*t+1024}')
    for t in range(5):
        P=RAW+40+8*t
        S(f'buffer_store_dwordx4 v[{P}:{P+3}], v5, {SW}, s56 offen offset:{64*t} sc1')
        S(f'buffer_store_dwordx4 v[{P+4}:{P+7}], v5, {SW}, s57 offen offset:{64*t} sc1', tok=f'F_o{t}')
    stamp(S,4 if mega else 9)
```

```python
from common import *
from k_r import trig,toA
M32='v_mfma_f32_32x32x16_bf16'
sM,sN,sB2,sN2,sLF='s33','s34','s35','s3','s77'
def g_ids(S, lbase):
    S(f'''s_lshr_b32 {sLF}, s2, 3
    s_sub_u32 {sLF}, {sLF}, {lbase}
    s_and_b32 s56, {sLF}, 3
    s_lshr_b32 s57, {sLF}, 2
    s_and_b32 s58, s2, 1
    s_lshl_b32 s59, s58, 2
    s_add_u32 {sM}, s59, s56
    s_bfe_u32 s60, s2, 0x20001
    s_mul_i32 s60, s60, 6
    s_add_u32 {sN}, s60, s57
    s_lshl_b32 s59, s58, 3
    s_bfe_u32 s60, s2, 0x10001
    s_lshl_b32 s60, s60, 2
    s_add_u32 s59, s59, s60
    s_add_u32 {sB2}, s59, s56
    s_bfe_u32 s60, s2, 0x10002
    s_mul_i32 s60, s60, 5
    s_add_u32 {sN2}, s60, s57''')
def B1(t): return f'v[{160+4*t}:{163+4*t}]' if t<24 else f'a[{192+4*(t-24)}:{195+4*(t-24)}]'
def B1h(t,u):
    k,b=('v',160+4*t) if t<24 else ('a',192+4*(t-24)); return f'{k}[{b+2*u}:{b+2*u+1}]'
ACC=32; CS=64; XF=80; ONES=112; TMP=116
SLOT=[0,40960,81920]; LZ=122880
UNIT=[40960+16384*u for u in range(7)]; STG=[4,5,6,0,1,2,3,4,5,6]
vXD,vWG,vWU,vL16,vTR,vTR2,vXA,vST,vWD,vT2=1,2,3,4,5,6,8,7,16,17
def ldsoff(o): return (1,o-65536) if o>=65536 else (0,o)
def x_dma(p,j):
    s=Stream()
    s(f's_add_u32 m0, s78, {SLOT[p%3]+j*(4096-128)}')
    s(f'buffer_load_dwordx4 v{vXD}, {SX}, s{80+p} offen offset:{128*j} lds', tok=f'x{p}_{j}')
    return s
def x_read(p,t,fr):
    hi,o=ldsoff(SLOT[p%3]+(t>>2)*4096)
    return I(f'ds_read_b128 v[{XF+4*fr}:{XF+4*fr+3}], v{vXA+4*hi+(t&3)} offset:{o}', tok=f'xr{p}_{t}')
def b2_dma(pc):
    s=Stream()
    s(f's_add_u32 m0, s79, {(pc&7)*1024}')
    s(f'buffer_load_dwordx4 v{vWD}, {SD}, s88 offen lds', tok=f'b2_{pc}')
    s('s_add_u32 s88, s88, 10240')
    return s
def b2_read(T):
    o=[]
    for ch in range(2):
        for u in range(2):
            a=8*T+4*ch+2*u
            o.append(I(f'ds_read_b64_tr_b16 a[{a}:{a+1}], v{vT2+ch} offset:{(T&3)*2048+u*512}', need=[f'b2_{2*T+1}'], tok=f'b2r{T}_{ch}{u}'))
    return o
def b2_addr(S):
    S(f'''v_lshrrev_b32 v20, 3, v0
    v_and_b32 v21, 7, v0
    v_and_b32 v22, 2, v20
    v_lshlrev_b32 v22, 1, v22
    v_xor_b32 v21, v21, v22
    v_lshlrev_b32 v21, 4, v21
    v_mul_u32_u24 v22, 1280, v20
    v_add_u32 v{vWD}, v21, v22
    s_lshl_b32 s79, {WV}, 13
    s_add_u32 s79, s79, {LZ}
    s_mul_i32 s88, {WV}, {384*1280}
    s_lshl_b32 s56, {sN2}, 7
    s_add_u32 s88, s88, s56
    v_bfe_u32 v20, v0, 2, 2
    v_lshrrev_b32 v21, 5, v0
    v_lshlrev_b32 v21, 10, v21
    v_lshl_add_u32 v21, v20, 7, v21
    v_lshrrev_b32 v20, 1, v20
    v_lshl_add_u32 v21, v20, 6, v21
    v_bfe_u32 v20, v0, 4, 1
    v_lshl_add_u32 v21, v20, 5, v21
    v_and_b32 v20, 3, v0
    v_lshl_add_u32 v21, v20, 3, v21
    v_add_u32 v{vT2}, s79, v21
    v_xor_b32 v{vT2+1}, 64, v{vT2}''')
def epilogue1(p):
    s=Stream(); A=ACC+16*(p&1); st=TMP+2*(p&1); K=TMP+4; T=TMP+8; O=TMP+32+4*(p&1)
    c1=2*0.7978845608028654*1.4426950408889634
    s(f'''v_mul_f32 v{K+2}, v{st+1}, v{st+1}
    v_mul_f32 v{K}, {fl(-c1)}, v{st+1}
    v_mul_f32 v{K+1}, {fl(0.044715)}, v{K+2}
    v_rcp_f32 v{K+2}, v{K+2}
    v_mul_f32 v{K+1}, v{K+1}, v{K}''')
    for h in range(2):
        R=range(4*h,4*h+4)
        for k in R: s(f'v_fma_f32 v{A+k}, -v{st}, v{CS+k}, v{A+k}')
        for k in R: s(f'v_mul_f32 v{T+k}, v{A+k}, v{A+k}')
        for k in R: s(f'v_fma_f32 v{T+k}, v{T+k}, v{K+1}, v{K}')
        for k in R: s(f'v_mul_f32 v{T+k}, v{T+k}, v{A+k}')
        for k in R: s(f'v_exp_f32 v{T+k}, v{T+k}\nv_fma_f32 v{A+8+k}, -v{st}, v{CS+8+k}, v{A+8+k}')
        for k in R: s(f'v_fma_f32 v{T+k}, v{T+k}, v{K+2}, v{K+2}')
        for k in R: s(f'v_rcp_f32 v{T+k}, v{T+k}\nv_mul_f32 v{A+k}, v{A+k}, v{A+8+k}')
        for k in R: s(f'v_mul_f32 v{A+k}, v{A+k}, v{T+k}')
        for k in range(2*h,2*h+2): s(f'v_cvt_pk_bf16_f32 v{O+k}, v{A+2*k}, v{A+2*k+1}')
    B=4*(p&1)+(p>>1)
    s(f's_add_u32 s56, s89, {B*96*1024}')
    s(f'buffer_store_dwordx4 v[{O}:{O+3}], v{vL16}, {SW}, s56 offen sc1', tok=f'h{p}')
    return s
def st_load(p):
    st=TMP+2*(p&1); B=4*(p&1)+(p>>1)
    return I(f'buffer_load_dwordx2 v[{st}:{st+1}], v{vST}, {SW}, s{90 if p&1 else 76} offen offset:{(p>>1)*1024} sc1')
vFL,vONE,vPD,vPO=24,25,26,30
def h_flag(p): return I(f'buffer_store_dword v{vONE}, v{vFL}, {SW}, s{90 if p&1 else 76} offen offset:{(p>>1)*1024+512} sc1', need=[f'h{p}'])
def st_check(p): return check(f'st{p}', st_load(p).text, f'v_cmp_eq_u32 vcc, 0, v{TMP+2*(p&1)+1}')
def gen_G1(S, with_b2=False, mega=False):
    S(f'''v_lshrrev_b32 v20, 3, v0
    v_and_b32 v21, 7, v0
    v_and_b32 v22, 2, v20
    v_xor_b32 v22, v21, v22
    v_mul_u32_u24 v23, 3072, v20
    v_lshl_add_u32 v{vWG}, v22, 4, v23
    v_xor_b32 v{vWU}, 64, v{vWG}
    s_lshl_b32 s56, {WV}, 2
    v_lshrrev_b32 v22, 4, v0
    v_add_u32 v22, s56, v22
    v_and_b32 v22, 7, v22
    v_xor_b32 v22, v21, v22
    v_mul_u32_u24 v23, 20480, v20
    v_lshl_add_u32 v{vXD}, v22, 4, v23
    s_lshl_b32 s78, {WV}, 10
    s_mul_i32 s56, {WV}, {8*20480}
    s_mul_i32 s57, {sM}, 2560
    s_add_u32 s80, s56, s57
    s_mul_i32 s91, {WV}, {16*3072}
    s_lshl_b32 s56, {sN}, 7
    s_add_u32 s91, s91, s56
    s_lshl_b32 s92, {WV}, 12''')
    def w_dma(i):
        s=Stream()
        for o in range(2):
            s(f's_add_u32 s56, s91, {(64*i+8*o)*3072}')
            s(f's_add_u32 m0, s92, {UNIT[STG[i]]+o*2048}')
            s(f'buffer_load_dwordx4 v{vWG}, {SA}, s56 offen lds')
            s(f's_add_u32 m0, s92, {UNIT[STG[i]]+o*2048+1024}')
            s(f'buffer_load_dwordx4 v{vWU}, {SB}, s56 offen lds', tok=f'w{i}_{o}')
        return s
    for i in range(7): S.extend(w_dma(i)); S.extend(x_dma(0,i))
    for j in (7,8,9): S.extend(x_dma(0,j))
    for p in range(1,8): S(f's_add_u32 s{80+p}, s80, {(p&1)*1280+(p>>1)*32*20480}')
    S(f'''v_lshlrev_b32 v{vL16}, 4, v0
    v_and_b32 v20, 31, v0
    v_lshlrev_b32 v{vST}, 3, v20
    s_lshl_b32 s76, {sM}, 13
    s_add_u32 s76, s76, {WS_FL}
    s_add_u32 s90, s76, 4096
    s_mul_i32 s89, {sM}, {8*96}
    s_lshl_b32 s56, {sN}, 2
    s_add_u32 s89, s89, s56
    s_add_u32 s89, s89, {WV}
    s_lshl_b32 s89, s89, 10
    s_add_u32 s89, s89, {WS_H}
    v_lshrrev_b32 v21, 5, v0
    v_bfe_u32 v22, v0, 1, 3
    v_xor_b32 v22, v21, v22
    v_lshlrev_b32 v22, 4, v22
    v_lshl_add_u32 v{vXA}, v20, 7, v22''')
    for tl in range(1,4): S(f'v_xor_b32 v{vXA+tl}, {32*tl}, v{vXA}')
    for tl in range(4): S(f'v_add_u32 v{vXA+4+tl}, 0x10000, v{vXA+tl}')
    S(f'''v_bfe_u32 v20, v0, 2, 2
    v_bfe_u32 v22, v0, 3, 2                ; (r>>1) + 2*mat
    v_xor_b32 v22, {WV}, v22
    v_lshlrev_b32 v22, 5, v22
    v_lshl_add_u32 v22, v20, 7, v22
    v_lshrrev_b32 v20, 4, v0
    v_lshl_add_u32 v22, v20, 10, v22
    v_and_b32 v20, 1, v0
    v_lshl_add_u32 v22, v20, 4, v22
    v_bfe_u32 v20, v0, 1, 1
    v_lshl_add_u32 v22, v20, 3, v22
    v_add_u32 v{vTR}, {UNIT[0]}, v22
    v_add_u32 v{vTR2}, {UNIT[4]}, v22''')
    for k in range(4): S(f'v_mov_b32 v{ONES+k}, 0x3f803f80')
    if with_b2:
        b2_addr(S)
        S(f's_cmp_ge_u32 {sLF}, 20\ns_cselect_b32 s56, {HUGE}, 0\ns_cselect_b32 s88, 0, s88\nv_add_u32 v{vWD}, s56, v{vWD}')
    if mega:
        S(f'''s_bfe_u32 s56, s2, 0x20001
        s_lshl_b32 s56, s56, 5
        s_and_b32 s57, {sLF}, 28
        s_add_u32 s56, s56, s57
        s_add_u32 s56, s56, {WV}
        s_lshl_b32 s56, s56, 2
        v_lshl_add_u32 v{vFL}, v0, 24, s56
        v_mov_b32 v{vONE}, 1
        s_cmp_eq_u32 {WV}, 0
        s_cselect_b32 s74, 0, {HUGE}
        s_cselect_b32 s75, 32, 0
        v_and_b32 v{vPO}, 1, v0
        v_lshl_add_u32 v{vPO}, v{vPO}, 7, s74''')
        ld0=f'buffer_load_dword v{vPD}, v{vPO}, {SG}, 0 offen sc1'
    else: S.append(st_load(0))
    stamp(S,2)
    def mf0(i):
        g=[]
        for tl in range(4):
            t=4*i+tl; fr=XF+4*(4*(i&1)+tl)
            g.append([I(f'{M32} v[{ACC}:{ACC+15}], {B1(t)}, v[{fr}:{fr+3}], '+('0' if t==0 else f'v[{ACC}:{ACC+15}]'))])
            g.append([I(f'{M32} v[{CS}:{CS+15}], {B1(t)}, v[{ONES}:{ONES+3}], '+('0' if t==0 else f'v[{CS}:{CS+15}]'))])
        return g
    for i in range(10):
        if mega and i==9: S.extend(check('ini_g', ld0, f'v_cmp_ne_u32 vcc, s75, v{vPD}'))
        S('s_barrier', need=[f'w{i}_1', f'x0_{i}']+([f'xr0_{4*i-1}'] if i else []))
        if i==0: stamp(S,3)
        rd=[]
        u_=STG[i]; va,o=(vTR,16384*u_) if u_<4 else (vTR2,16384*(u_-4))
        for tl in range(4):
            t=4*i+tl
            for u in range(2): rd.append(I(f'ds_read_b64_tr_b16 {B1h(t,u)}, v{va} offset:{o+tl*4096+u*512}'))
            rd.append(x_read(0,t,4*(i&1)+tl))
        dm=[]
        if 1<=i<=3: dm=list(w_dma(i+6))
        if i==4: dm=[x for j in range(0,4) for x in x_dma(1,j)]
        if i==5: dm=[x for j in range(4,8) for x in x_dma(1,j)]
        if i==6: dm=[x for j in range(8,10) for x in x_dma(1,j)]
        if mega and i==3: dm.append(I(ld0))
        if mega and i==9: dm=[st_load(0)]
        if i==0: S.extend(rd)
        else:
            g=mf0(i-1); weave(g,rd,0,4); weave(g,dm,3,8); S.extend(flat(g))
    D=4
    groups=mf0(9)
    base={}
    for p in range(1,8):
        base[p]=len(groups); A=ACC+16*(p&1)
        for t in range(40):
            fr=XF+4*(t&7)
            groups.append([I(f'{M32} v[{A}:{A+15}], {B1(t)}, v[{fr}:{fr+3}], '+('0' if t==0 else f'v[{A}:{A+15}]'))])
    pc=0; Tn=0
    for p in range(1,8):
        b=base[p]
        groups[b-3].append(I('s_barrier', need=[f'x{p}_9', f'xr{p-1}_39']))
        groups[b-3]+= (stampI(3+p) if not mega else stampI({1:4,4:5}[p]) if p in(1,4) else [])+[x_read(p,0,0), x_read(p,1,1)]
        groups[b-2]+= [x_read(p,2,2), x_read(p,3,3)]
        for t in range(4,40,2):
            groups[b+t-5]+= [x_read(p,t,t&7), x_read(p,t+1,(t+1)&7)]
        if p<7: weave(groups,[x_dma(p+1,j) for j in range(10)],b-2,b+18)
        e0=b+14 if (mega and p==1) else b+2
        if mega: groups[e0-1].extend(st_check(p-1))
        weave(groups,list(epilogue1(p-1)),e0,b+36)
        if mega and p>1: groups[b+19].append(h_flag(p-2))
        groups[b+20].append(st_load(p))
        if with_b2:
            if p>1:
                rd=[x for T in range(4*(p-2),4*(p-1)) for x in b2_read(T)]
                weave(groups,rd,b+2,b+18)
            if p<7:
                d=[b2_dma(q) for q in range(8*(p-1),8*p)]
                if p>1: d[0][1].need.append(f'b2r{4*(p-1)-1}_11')
                weave(groups,d,b+20,b+36)
    S.extend(flat(groups))
    stamp(S,6 if mega else 11)
    if mega: S.extend(st_check(7))
    S.extend(epilogue1(7))
    if mega: S.append(h_flag(6))
    else: stamp(S,12)

def gen_G2(S, endl, standalone=True):
    mega=not standalone
    S(f's_cmp_ge_u32 {sLF}, 20\ns_cbranch_scc1 {endl}')
    if mega:
        S(f'''v_min_u32 v{vPO}, 23, v0
        s_lshl_b32 s56, {WV}, 7
        v_lshl_add_u32 v{vPO}, v{vPO}, 2, s56
        s_lshl_b32 s73, {sB2}, 12
        s_add_u32 s73, s73, {WS_FL}''')
    hp=lambda r: f'buffer_load_dword v{vPD}, v{vPO}, {SW}, s73 offen offset:{r*1024+512} sc1'
    hc=lambda r: check(f'hf{r}', hp(r), f'v_cmp_eq_u32 vcc, 0, v{vPD}')
    if mega: S(hp(0)); S.extend(hc(0)); S.append(h_flag(7))
    if standalone:
        b2_addr(S); S(f'v_lshlrev_b32 v{vL16}, 4, v0')
        for rnd in range(6):
            for q in range(8*rnd,8*rnd+8):
                d=b2_dma(q)
                if rnd and q%8==0: d[1].need.append(f'b2r{4*rnd-1}_11')
                S.extend(d)
            for T in range(4*rnd,4*rnd+4): S.extend(b2_read(T))
    stamp(S,7 if mega else 2)
    HF=160; AG=192; AU=224; RT=96; GG=128
    LP=[0,32768]; LS=65536; LU=98304
    vPW,vPR,vXO,vUD,vUT=8,12,14,15,18
    S(f'''s_mul_i32 s80, {sB2}, {4*96}
    s_mul_i32 s56, {WV}, 24
    s_add_u32 s80, s80, s56
    s_lshl_b32 s80, s80, 10
    s_add_u32 s80, s80, {WS_H}''')
    def h_load(r,T):
        s=Stream()
        if T%4==0: s(f's_add_u32 s81, s80, {r*96*1024+T*1024}')
        s(f'buffer_load_dwordx4 v[{HF+4*T}:{HF+4*T+3}], v{vL16}, {SW}, s81 offen offset:{(T&3)*1024} sc1')
        return s
    if mega: S(hp(1))
    for T in range(24): S.extend(h_load(0,T))
    S(f'''v_and_b32 v20, 31, v0
    v_lshrrev_b32 v21, 5, v0
    v_and_b32 v22, 7, v0
    v_xor_b32 v21, v21, v22
    v_lshlrev_b32 v21, 4, v21
    v_lshl_add_u32 v21, v20, 8, v21
    s_lshl_b32 s56, {WV}, 13
    v_add_u32 v{vPW}, s56, v21''')
    for rq in range(1,4): S(f'v_xor_b32 v{vPW+rq}, {32*rq}, v{vPW}')
    S(f'''v_lshrrev_b32 v20, 3, v0
    v_lshlrev_b32 v21, 1, v22
    v_xor_b32 v21, v21, v20
    v_lshlrev_b32 v21, 4, v21
    v_lshl_add_u32 v21, v20, 8, v21
    s_lshl_b32 s56, {WV}, 11
    v_add_u32 v{vPR}, s56, v21
    v_xor_b32 v{vPR+1}, 16, v{vPR}
    v_mul_u32_u24 v21, 20480, v20
    v_lshl_add_u32 v{vXO}, v22, 4, v21
    v_and_b32 v21, 2, v20
    v_lshlrev_b32 v21, 1, v21
    v_xor_b32 v21, v21, v22
    v_lshlrev_b32 v21, 4, v21
    v_and_b32 v23, 1, v20
    v_mul_u32_u24 v23, 1280, v23
    v_lshrrev_b32 v20, 4, v0
    v_mul_u32_u24 v20, 40960, v20
    v_add3_u32 v{vUD}, v20, v21, v23
    s_sub_u32 s56, {LU}, s79
    v_add_u32 v{vUT}, s56, v{vT2}
    v_xor_b32 v{vUT+1}, 64, v{vUT}
    s_mul_i32 s82, {sB2}, 1280
    s_lshl_b32 s56, {sN2}, 7
    s_add_u32 s83, s82, s56
    s_add_u32 s82, s83, s82
    s_mul_i32 s56, {WV}, {16*40960}
    s_add_u32 s82, s82, s56
    s_add_u32 s82, s82, {WS_U}             ; U soffset
    s_mul_i32 s56, {WV}, {8*20480}
    s_add_u32 s83, s83, s56
    s_lshl_b32 s84, {WV}, 12
    s_add_u32 s84, s84, {LU}
    s_mov_b32 s85, {fl(-1.4426950408889634)}
    s_mov_b32 s86, {fl(2048*640/2)}
    s_mov_b32 s87, 0xffff0000''')
    gs=Stream()
    gs(f'''v_and_b32 v20, 31, v0
    s_lshl_b32 s56, {WV}, 5
    v_add_u32 v20, s56, v20
    v_cvt_f32_u32 v20, v20
    v_mul_f32 v21, 0.5, v20
    v_cos_f32 v21, v21
    v_mul_f32 v20, {fl(1/128)}, v20
    v_lshrrev_b32 v22, 5, v0
    v_lshlrev_b32 v22, 2, v22
    v_cvt_f32_u32 v22, v22
    v_mul_f32 v22, v22, v20
    v_cmp_gt_u32 s[58:59], 32, v0''')
    for T in range(8):
        trig(gs,RT,20,22,[8*T+k for k in range(4)])
        if T==0: gs(f'v_cndmask_b32 v{RT+4}, v{RT+4}, v21, s[58:59]')
        for k in range(4): gs(f'v_cvt_pk_bf16_f32 v{RT+k}, v{RT+k}, v{RT+4+k}')
        toA(gs,AG+4*T,RT,4)
    def pwrite(A,base,tok):
        s=Stream()
        for ch in range(2):
            for rq in range(4):
                s(f'ds_write_b128 v{vPW+rq}, v[{A+16*ch+4*rq}:{A+16*ch+4*rq+3}] offset:{base+128*ch}', tok=tok+f'{ch}{rq}')
        return s
    def reduce(r):
        s=Stream(); G=GG+8*r
        s('s_barrier', need=[f'pw{r}_13'])
        for wv in range(4):
            for u in range(2): s(f'ds_read_b128 v[{RT+8*wv+4*u}:{RT+8*wv+4*u+3}], v{vPR+u} offset:{LP[r&1]+wv*8192}')
        for k in range(8): s(f'v_add_f32 v{RT+k}, v{RT+k}, v{RT+8+k}')
        for k in range(8): s(f'v_add_f32 v{RT+16+k}, v{RT+16+k}, v{RT+24+k}')
        for k in range(8): s(f'v_add_f32 v{G+k}, v{RT+k}, v{RT+16+k}')
        for k in range(8): s(f'v_mul_f32 v{RT+k}, s85, v{G+k}')
        for k in range(8): s(f'v_exp_f32 v{RT+k}, v{RT+k}')
        for k in range(8): s(f'v_fma_f32 v{RT+k}, v{RT+k}, s86, s86')
        for k in range(8): s(f'v_rcp_f32 v{RT+k}, v{RT+k}')
        for k in range(8): s(f'v_mul_f32 v{G+k}, v{G+k}, v{RT+k}')
        return s
    groups=[]
    for r in range(4):
        A=32+32*(r&1); b=len(groups)
        for T in range(24):
            for ch in range(2):
                c=A+16*ch
                groups.append([I(f'{M32} v[{c}:{c+15}], a[{8*T+4*ch}:{8*T+4*ch+3}], v[{HF+4*T}:{HF+4*T+3}], '+('0' if T==0 else f'v[{c}:{c+15}]'))])
            if r<3: groups[-1].extend(h_load(r+1,T))
        groups[b]+=stampI((8 if mega else 3)+r)
        if mega and r<3: groups[b]+=hc(r+1)
        if mega and r<2: groups[b+30].append(I(hp(r+2)))
        if r==0: weave(groups,list(gs),b,b+48)
        if r>0:
            weave(groups,list(pwrite(32+32*((r-1)&1),LP[(r-1)&1],f'pw{r-1}_')),b+3,b+11)
            weave(groups,list(reduce(r-1)),b+14,b+46)
        if r==3:
            ud=Stream()
            for k in range(4):
                ud(f's_add_u32 m0, s84, {k*1024}')
                ud(f'buffer_load_dwordx4 v{vUD}, {SW}, s82 offen sc1 lds', tok=f'u{k}')
                ud(f's_add_u32 s82, s82, {4*40960}')
            weave(groups,list(ud),b+15,b+21)
            if mega:
                ldu=f'buffer_load_dword v{vPD}, v{vPO}, {SW}, s73 offen offset:384 sc1'
                groups[b-12]+=[I(f'v_lshl_add_u32 v{vPO}, v0, 10, s74'),I(f's_mov_b32 s73, {WS_FL}'),I('s_lshr_b32 s75, s75, 5'),I(ldu)]
                groups[b+13]+=check('uf',ldu,f'v_cmp_ne_u32 vcc, s75, v{vPD}')
    S.extend(flat(groups))
    if not mega: stamp(S,7)
    for r in range(4):
        S(f's_add_u32 s56, s83, {r*32*20480}')
        S(f'buffer_load_dwordx4 v[{HF+4*r}:{HF+4*r+3}], v{vXO}, {SX}, s56 offen')
    A=32
    sg=[]
    rd=[[I(f'ds_read_b64_tr_b16 a[{AU+4*(n&7)+2*u}:{AU+4*(n&7)+2*u+1}], v{vUT+(n&1)} offset:{(n>>1)*2048+u*512}') for u in range(2)] for n in range(16)]
    S.extend(pwrite(64,LP[1],'pw3_'))
    rr=reduce(3); rr[0].need.append('u3'); S.append(rr[0])
    for n in range(6): S.extend(rd[n])
    for n in range(16):
        T,ch=n>>1,n&1; c=A+16*ch; f=AU+4*(n&7)
        sg.append([I(f'{M32} v[{c}:{c+15}], a[{f}:{f+3}], a[{AG+4*T}:{AG+4*T+3}], '+('0' if T==0 else f'v[{c}:{c+15}]'))])
        if n+6<16: sg[-1].extend(rd[n+6])
    weave(sg,list(rr[1:]),0,16)
    S.extend(flat(sg))
    S(f'v_add_u32 v20, {LS}, v{vPR}\nv_add_u32 v21, {LS}, v{vPR+1}')
    for rq in range(4): S(f'v_add_u32 v{vPW+rq}, {LS}, v{vPW+rq}')
    stamp(S,12 if mega else 8)
    S.extend(pwrite(A,0,'sw_'))
    S('s_barrier', need=['sw_13'])
    for r in range(4):
        for u in range(2): S(f'ds_read_b128 v[{32+8*r+4*u}:{35+8*r+4*u}], v{20+u} offset:{r*8192}')
    for r in range(4):
        X=HF+4*r; T=64+8*r
        for k in range(4): S(f'v_lshlrev_b32 v{T+2*k}, 16, v{X+k}\nv_and_b32 v{T+2*k+1}, s87, v{X+k}')
        for k in range(8): S(f'v_fmac_f32 v{T+k}, v{32+8*r+k}, v{GG+8*r+k}')
        for k in range(4): S(f'v_cvt_pk_bf16_f32 v{X+k}, v{T+2*k}, v{T+2*k+1}')
        S(f's_add_u32 s56, s83, {r*32*20480}')
        S(f'buffer_store_dwordx4 v[{X}:{X+3}], v{vXO}, {SO}, s56 offen')
    if not mega: stamp(S,10)
```

```python
from common import *
A_S1F=0; A_S1FM=12; A_S2F=60; A_MF=100; A_MI=124; A_S2I=148; A_S1I=188; A_S1IM=200
V_W=176
L_T=0; L_E=40960; L_W=90112; WP=656
def toA(S,a,v,n=4):
    for i in range(n): S(f'v_accvgpr_write_b32 a{a+i}, v{v+i}')
def trig(S,tmp,vf,vph,mults):
    n=len(mults)
    for i,m in enumerate(mults):
        if m: S(f'v_fmamk_f32 v{tmp+n+i}, v{vf}, {fl(m)}, v{vph}')
    for i,m in enumerate(mults):
        src=tmp+n+i if m else vph
        S(f'v_cos_f32 v{tmp+i}, v{src}\nv_sin_f32 v{tmp+n+i}, v{src}')
def gen_R_consts(S,sT,part):
    T=16
    if part=='s1':
        S(f'''v_and_b32 v2, 31, v0
        v_lshrrev_b32 v3, 5, v0
        v_cvt_f32_u32 v3, v3                   ; hf
        v_bfe_u32 v8, v0, 3, 2
        v_mov_b32 v9, 0''')
        for merged in (0,1):
            if merged: S('v_and_b32 v2, 7, v0\nv_add_u32 v2, 32, v2')
            S(f'''v_lshrrev_b32 v4, 1, v2
            v_and_b32 v5, 1, v2
            v_cmp_eq_u32 vcc, 1, v2
            v_cndmask_b32 v4, v4, 20, vcc
            v_cndmask_b32 v5, v5, 0, vcc
            v_cvt_f32_u32 v4, v4
            v_cvt_f32_u32 v5, v5
            v_mul_f32 v4, {fl(1/40)}, v4
            v_mul_f32 v5, {fl(-0.25)}, v5
            v_mul_f32 v6, v4, v3
            v_fma_f32 v7, v6, 4.0, v5
            v_fma_f32 v6, v6, 4.0, v7''')
            for t in range(3):
                gen_cos_frag(S, T+8+4*t, 4, 6 if t<2 else 7, [16*t+k for k in range(8)], T, dstk='v')
            S(f'v_mov_b32 v{T+18}, 0\nv_mov_b32 v{T+19}, 0')
            if not merged: toA(S,A_S1F,T+8,12)
            else:
                for pr in range(4):
                    S(f'v_cmp_eq_u32 vcc, {pr}, v8')
                    for i in range(12): S(f'v_cndmask_b32 v{T+20+i}, v9, v{T+8+i}, vcc')
                    toA(S,A_S1FM+12*pr,T+20,12)
        S('v_and_b32 v2, 31, v0')
        for merged in (0,1):
            if merged: S('v_and_b32 v2, 7, v0\nv_add_u32 v2, 32, v2')
            S(f'''v_cvt_f32_u32 v4, v2
            v_mul_f32 v5, 0.5, v4
            v_cos_f32 v5, v5                       ; (-1)^p
            v_mul_f32 v4, {fl(1/40)}, v4
            v_mul_f32 v7, v4, v3
            v_add_f32 v7, v7, v7                   ; t=2 base
            v_add_f32 v6, v7, v7
            v_cmp_gt_u32 vcc, 32, v0''')
            for t in range(3):
                trig(S,T,4,6 if t<2 else 7,[8*t+k for k in range(4)])
                if t==0: S(f'v_cndmask_b32 v{T+4}, v{T+4}, v5, vcc')
                for k in range(4): S(f'v_cvt_pk_bf16_f32 v{T+8+4*t+k}, v{T+k}, v{T+4+k}')
            S(f'v_mov_b32 v{T+18}, 0\nv_mov_b32 v{T+19}, 0')
            if not merged: toA(S,A_S1I,T+8,12)
            else:
                for pr in range(4):
                    S(f'v_cmp_eq_u32 vcc, {pr}, v8')
                    for i in range(12): S(f'v_cndmask_b32 v{T+20+i}, v9, v{T+8+i}, vcc')
                    toA(S,A_S1IM+12*pr,T+20,12)
    if part=='m':
        S(f'''s_cmp_eq_u32 {sT}, 0
        s_cselect_b32 s56, 64, {sT}            ; t0
        s_cselect_b32 s57, 0, {fl(0.25)}
        s_cselect_b32 s58, 0xffff0000, -1
        s_cselect_b32 s59, 0x0000ffff, -1
        s_cselect_b64 s[60:61], 0, -1
        s_mov_b32 s62, 0x80008000
        v_and_b32 v2, 15, v0
        v_lshrrev_b32 v3, 4, v0
        v_cvt_f32_u32 v9, v3                   ; g''')
        for ot in range(2):
            sg=-1 if ot==0 else 1
            S(f'''v_lshl_add_u32 v4, v2, 7, {'s56' if ot==0 else sT}
            v_cvt_f32_u32 v4, v4
            v_mul_f32 v4, {fl(sg/2048)}, v4        ; f
            v_mul_f32 v5, v4, v9
            v_add_f32 v5, v5, v5                   ; e=0 base
            v_{'sub' if ot==0 else 'add'}_f32_e64 v6, v5, s57   ; e=1 base''')
            trig(S,T,4,5,[0,1,8,9]); trig(S,T+8,4,6,[0,1,8,9])
            for k in range(4):
                S(f'''v_cvt_pk_bf16_f32 v{T+16+k}, v{T+k}, v{T+8+k}
                v_cvt_pk_bf16_f32 v{T+20+k}, v{T+4+k}, v{T+12+k}''')
            for k in range(8): S(f'v_and_b32 v{T+16+k}, s{58+ot}, v{T+16+k}')
            for k in range(4): S(f'v_xor_b32 v{T+24+k}, s62, v{T+20+k}')
            toA(S,A_MF+12*ot,T+16,12)
        S(f'''v_and_b32 v7, 1, v0
        v_cmp_eq_u32 vcc, 1, v7
        s_or_b64 s[64:65], vcc, s[60:61]
        s_orn2_b64 s[66:67], s[60:61], vcc
        v_cvt_f32_u32 v7, v7
        v_mul_f32 v7, s57, v7                  ; e*quarter
        v_lshl_add_u32 v10, v3, 9, s56
        v_lshl_add_u32 v11, v3, 9, {sT}
        v_cvt_f32_u32 v10, v10
        v_cvt_f32_u32 v11, v11
        v_mul_f32 v10, {fl(1/128)}, v10
        v_mul_f32 v11, {fl(1/128)}, v11''')
        for rt in range(2):
            S(f'''v_bfe_u32 v4, v0, 1, 3
            v_add_u32 v4, {8*rt}, v4
            v_cvt_f32_u32 v4, v4
            v_mul_f32 v5, {fl(1/16)}, v4           ; +f
            v_mul_f32 v4, {fl(-1/16)}, v4          ; -f
            v_fma_f32 v6, v4, v10, -v7
            v_fma_f32 v8, v5, v11, v7''')
            trig(S,T,4,6,[0,1,2,3]); trig(S,T+8,5,8,[0,1,2,3])
            for ot in range(2):
                for k in range(2):
                    S(f'''v_cvt_pk_bf16_f32 v{T+16+2*ot+k}, v{T+8*ot+2*k}, v{T+8*ot+2*k+1}
                    v_cvt_pk_bf16_f32 v{T+20+2*ot+k}, v{T+8*ot+4+2*k}, v{T+8*ot+4+2*k+1}''')
            for k in range(8): S(f'v_cndmask_b32 v{T+16+k}, 0, v{T+16+k}, s[{64+(k&2)}:{65+(k&2)}]')
            for k in range(4): S(f'v_xor_b32 v{T+24+k}, s62, v{T+20+k}')
            toA(S,A_MI+12*rt,T+16,12)
    if part=='s2':
        S(f'''s_mul_i32 s56, {WV}, 5
        s_cmp_eq_u32 {WV}, 0
        s_cselect_b32 s57, 20, s56
        s_cselect_b32 s58, 0, {fl(0.25)}
        s_cselect_b64 s[60:61], 0, -1
        v_and_b32 v2, 15, v0
        v_lshrrev_b32 v3, 4, v0''')
        S(f'''v_cmp_gt_u32 s[62:63], 8, v2           ; n<8
        v_mul_u32_u24 v4, 40, v2
        v_subrev_u32 v5, 280, v4
        v_subrev_u32 v5, s56, v5
        v_add_u32 v6, s57, v4
        v_add_u32 v4, s56, v4
        v_cndmask_b32 v6, v5, v6, s[62:63]
        v_cndmask_b32 v4, v5, v4, s[62:63]
        v_cndmask_b32 v5, -1.0, 1.0, s[62:63]  ; sign
        v_cvt_f32_u32 v6, v6
        v_cvt_f32_u32 v4, v4
        v_lshrrev_b32 v7, 5, v0
        v_cmp_eq_u32 vcc, 1, v7
        s_xnor_b64 s[64:65], vcc, s[62:63]
        s_or_b64 s[64:65], s[64:65], s[60:61]
        v_cvt_f32_u32 v7, v7
        v_mul_f32_e64 v7, v7, -v5              ; -/+ e
        v_and_b32 v8, 1, v3
        v_lshlrev_b32 v8, 3, v8
        v_cvt_f32_u32 v8, v8                   ; 8*qh''')
        for i in range(5):
            if i: S(f'v_fmamk_f32 v6, v5, {fl(i)}, v4')
            S(f'''v_mul_f32 v9, {fl(-1/640)}, v6
            v_mul_f32 v10, {'s58' if i==0 else fl(0.25)}, v7
            v_fma_f32 v10, v9, v8, v10''')
            trig(S,T,9,10,list(range(8)))
            for k in range(8): S(f'v_cvt_pk_bf16_f32 v{T+16+k}, v{T+2*k}, v{T+2*k+1}')
            if i==0:
                for k in range(8): S(f'v_cndmask_b32 v{T+16+k}, 0, v{T+16+k}, s[64:65]')
            toA(S,A_S2F+8*i,T+16,8)
        S(f'''v_cmp_gt_u32 s[62:63], 2, v3
        v_mul_u32_u24 v4, 160, v3
        v_subrev_u32 v5, 280, v4
        v_subrev_u32 v5, s56, v5
        v_add_u32 v6, s57, v4
        v_add_u32 v4, s56, v4
        v_cndmask_b32 v6, v5, v6, s[62:63]
        v_cndmask_b32 v4, v5, v4, s[62:63]
        v_cndmask_b32 v5, -1.0, 1.0, s[62:63]
        v_cvt_f32_u32 v6, v6
        v_cvt_f32_u32 v4, v4
        v_bfe_u32 v7, v0, 3, 1
        v_cmp_eq_u32 vcc, 1, v7
        s_xnor_b64 s[64:65], vcc, s[62:63]
        s_or_b64 s[64:65], s[64:65], s[60:61]
        v_cvt_f32_u32 v7, v7
        v_mul_f32_e64 v7, v7, -v5
        v_and_b32 v8, 4, v0
        v_and_b32 v9, 3, v0
        v_lshl_add_u32 v8, v8, 1, v9
        v_cvt_f32_u32 v8, v8
        v_mul_f32 v8, {fl(-1/16)}, v8          ; -q/16, mt=0
        v_add_f32 v9, {fl(-0.25)}, v8          ; mt=1''')
        for i in range(5):
            if i: S(f'v_fmamk_f32 v6, v5, {fl(i)}, v4')
            S(f'''v_mul_f32 v11, {fl(1/40)}, v6
            v_mul_f32 v10, {'s58' if i==0 else fl(0.25)}, v7
            v_fma_f32 v12, v9, v11, v10
            v_fma_f32 v10, v8, v11, v10''')
            trig(S,T,8,10,[0,1,2,3]); trig(S,T+8,9,12,[0,1,2,3])
            for k in range(8): S(f'v_cvt_pk_bf16_f32 v{T+16+k}, v{T+2*k}, v{T+2*k+1}')
            if i==0:
                for k in range(8): S(f'v_cndmask_b32 v{T+16+k}, 0, v{T+16+k}, s[64:65]')
            toA(S,A_S2I+8*i,T+16,8)
def gen_R_wload(S,sT):
    S(f'''s_cmp_eq_u32 {sT}, 0
    s_cselect_b32 s56, 64, {sT}
    s_lshl_b32 s57, {WV}, 10
    s_add_u32 s56, s56, s57                ; j of first row (w<2)
    s_sub_u32 s58, 4096, s57
    s_sub_u32 s58, s58, {sT}               ; (w>=2) 2048-(t+128*(8w-16)), mod 2048 below
    s_cmp_lt_u32 {WV}, 2
    s_cselect_b32 s56, s56, s58
    s_cselect_b32 s57, 1, -1
    s_lshl_b32 s57, s57, 7
    s_mul_i32 s59, {WV}, {8*WP}
    s_add_u32 s59, s59, {L_W}
    v_lshlrev_b32 v2, 4, v0
    s_mov_b64 exec, 0x1ffffffffff'''.replace('s_mov_b64 exec, 0x1ffffffffff','s_mov_b32 exec_hi, 0x1ff'))
    for r in range(8):
        S(f'''s_and_b32 s58, s56, 2047
        s_mul_i32 s58, s58, 642
        s_and_b32 s58, s58, -16
        s_add_u32 m0, s59, {r*WP}
        buffer_load_dwordx4 v2, {SA}, s58 offen lds
        s_add_u32 m0, s59, {(32+r)*WP}''')
        S(f'buffer_load_dwordx4 v2, {SB}, s58 offen lds', tok=f'R_w{r}')
        S('s_add_u32 s56, s56, s57')
    S('s_mov_b32 exec_hi, -1')
def gen_R_wgather(S,sT):
    S('s_barrier', need=['R_w7'])
    S(f'''s_mul_i32 s56, {WV}, 5
    s_cmp_eq_u32 {WV}, 0
    s_cselect_b32 s57, 20, s56
    v_and_b32 v2, 15, v0
    v_lshrrev_b32 v3, 4, v0
    v_cmp_gt_u32 vcc, 8, v2
    v_mul_u32_u24 v4, 40, v2
    v_subrev_u32 v5, 280, v4
    v_subrev_u32 v5, s56, v5
    v_add_u32 v6, s57, v4
    v_add_u32 v4, s56, v4
    v_cndmask_b32 v6, v5, v6, vcc
    v_cndmask_b32 v4, v5, v4, vcc
    v_cndmask_b32 v5, -2, 2, vcc
    v_cmp_eq_u32 vcc, 320, v6
    v_cndmask_b32 v9, 1.0, 0.5, vcc
    v_mul_u32_u24 v3, {4*WP}, v3
    v_lshl_add_u32 v6, v6, 1, v3
    v_lshl_add_u32 v4, v4, 1, v3
    s_lshl_b32 s58, {sT}, 1
    s_sub_u32 s59, 0, s58
    s_and_b32 s58, s58, 15
    s_and_b32 s59, s59, 15
    s_add_u32 s58, s58, {L_W}
    s_add_u32 s59, s59, {L_W+16*WP}''')
    for i in range(5):
        if i: S(f'v_add_u32 v4, v4, v5\nv_mov_b32 v6, v4')
        S('v_add_u32 v7, s58, v6\nv_add_u32 v8, s59, v6')
        for ri in range(2):
            for ot in range(2):
                for r in range(4):
                    S(f'ds_read_u16 v{V_W+16*i+8*ri+4*ot+r}, v{7+ot} offset:{(32*ri+r)*WP}')
        for k in range(16):
            S(f'v_lshlrev_b32 v{V_W+16*i+k}, 16, v{V_W+16*i+k}')
            if i==0: S(f'v_mul_f32 v{V_W+k}, v9, v{V_W+k}')
def gen_R_addr(S,sT):
    S(f'''v_lshlrev_b32 v1, 4, v0                ; v1 = lane*16
    s_mul_i32 s74, {WV}, 10240
    s_mul_i32 s75, {sT}, 40960
    s_add_u32 s75, s75, s74
    s_add_u32 s76, s75, {WS_U}
    s_add_u32 s75, s75, {WS_T}
    v_bfe_u32 v10, v0, 2, 2                ; r
    v_lshrrev_b32 v11, 5, v0               ; g>>1 = hf
    v_bfe_u32 v12, v0, 4, 1                ; g&1
    v_and_b32 v13, 1, v0
    v_bfe_u32 v14, v0, 1, 1
    v_lshlrev_b32 v14, 3, v14
    v_mul_u32_u24 v2, 1280, v12
    v_lshl_add_u32 v2, v13, 4, v2
    v_add3_u32 v2, v2, v14, s74
    v_lshl_add_u32 v2, v10, 5, v2
    v_lshl_add_u32 v3, v11, 7, v2          ; v3: t=2
    v_lshl_add_u32 v2, v11, 8, v2          ; v2: t<2
    s_lshl_b32 s56, {WV}, 7
    s_add_u32 s56, s56, {L_E}
    v_mul_u32_u24 v8, 544, v13
    v_lshl_add_u32 v8, v12, 4, v8
    v_add3_u32 v8, v8, v14, s56
    v_lshl_add_u32 v9, v11, 2, v10
    v_lshl_add_u32 v10, v11, 3, v10
    v_mul_u32_u24 v9, 1088, v9
    v_mul_u32_u24 v10, 1088, v10
    v_add_u32 v9, v9, v8                   ; v9: t=2
    v_add_u32 v8, v10, v8                  ; v8: t<2
    ; E1 write
    v_and_b32 v10, 31, v0
    v_mul_u32_u24 v4, 1040, v10
    v_lshl_add_u32 v13, v11, 9, s56
    v_add_u32 v4, v4, v13                  ; v4 main
    v_and_b32 v14, 7, v0
    v_mul_u32_u24 v5, 1040, v14
    v_bfe_u32 v15, v0, 3, 2
    v_lshl_add_u32 v5, v15, 5, v5
    v_add_u32 v5, v5, v13
    v_lshlrev_b32 v13, 4, v11
    v_lshl_add_u32 v14, v14, 5, v13
    v_mul_u32_u24 v15, 2560, v15
    v_add_u32 v15, v15, v14
    v_lshl_add_u32 v14, v10, 5, v13        ; v14 main
    v_and_b32 v10, 15, v0
    v_lshlrev_b32 v10, 4, v10
    s_mul_i32 s56, {WV}, {5*2080}
    s_add_u32 s56, s56, {L_E}
    v_mul_u32_u24 v6, 1040, v11
    v_lshl_add_u32 v6, v12, 9, v6
    v_add3_u32 v6, v6, v10, s56            ; v6
    s_mul_i32 s56, {WV}, {10*1088}
    s_add_u32 s56, s56, {L_E}
    v_lshrrev_b32 v7, 4, v0
    v_mul_u32_u24 v7, 544, v7
    v_add3_u32 v7, v7, v10, s56            ; v7''')
def stage1(S, va, vb, strides, aM, aX, emit):
    ps,ks=strides
    FR=96; ACC=16
    for pr in range(4):
        f=FR+12*pr
        S(f'v_mov_b32 v{f+10}, 0\nv_mov_b32 v{f+11}, 0')
        for t in range(2):
            for u in range(2): S(f'ds_read_b64_tr_b16 v[{f+4*t+2*u}:{f+4*t+2*u+1}], v{va} offset:{pr*ps+(4*t+u)*ks}')
        S(f'ds_read_b64_tr_b16 v[{f+8}:{f+9}], v{vb} offset:{pr*ps+8*ks}')
    for pr in range(4):
        f=FR+12*pr; c=ACC+16*pr; m=ACC+64
        for t in range(3):
            S(f'v_mfma_f32_32x32x16_bf16 v[{m}:{m+15}], v[{f+4*t}:{f+4*t+3}], a[{aX+12*pr+4*t}:{aX+12*pr+4*t+3}], '+('0' if pr==0 and t==0 else f'v[{m}:{m+15}]'))
        for t in range(3):
            S(f'v_mfma_f32_32x32x16_bf16 v[{c}:{c+15}], v[{f+4*t}:{f+4*t+3}], a[{aM+4*t}:{aM+4*t+3}], '+('0' if t==0 else f'v[{c}:{c+15}]'))
    for tile in (0,1,2,4,3):
        c=ACC+16*tile
        for k in range(8): S(f'v_cvt_pk_bf16_f32 v{c+k}, v{c+2*k}, v{c+2*k+1}')
        emit(tile,c)
def gen_R_main(S,sT):
    S(f's_mov_b32 m0, s74')
    for i in range(10):
        if i in(4,8): S(f's_add_u32 m0, s74, {i*1024}\ns_add_u32 s75, s75, 4096')
        S(f'buffer_load_dwordx4 v1, {SW}, s75 offen offset:{(i&3)*1024} sc1 lds', tok=f'R_t{i}')
    S.wait('R_t9'); stamp(S,9)
    def e1(tile,c):
        for row in range(2):
            if tile<4: S(f'ds_write_b128 v4, v[{c+4*row}:{c+4*row+3}] offset:{(2*tile+row)*16}', tok=f'R_e1_{tile}{row}')
            else: S(f'ds_write_b128 v5, v[{c+4*row}:{c+4*row+3}] offset:{32*1040+row*16}', tok=f'R_e1_{tile}{row}')
    stage1(S,2,3,(2560,128),A_S1F,A_S1FM,e1)
    S('s_barrier', need=['R_e1_31']); stamp(S,10)
    M16='v_mfma_f32_16x16x32_bf16'
    q=lambda b,k='v': f'{k}[{b}:{b+3}]'
    for i in range(5):
        B=16+32*i
        for rt in range(2): S(f'ds_read_b128 {q(B+4*rt)}, v6 offset:{i*2080+rt*256}', tok=f'R_r{i}{rt}')
    S('s_barrier', need=['R_r41'])
    for i in range(5):
        B=16+32*i; P=B; P2=B+8; C=B+16; W=V_W+16*i
        for ri in range(2):
            for rt in range(2): S(f'{M16} {q(C+8*ri+4*rt)}, {q(P+4*rt)}, {q(A_S2F+8*i+4*ri,"a")}, 0')
        for k in range(8): S(f'v_cvt_pk_bf16_f32 v{P2+k}, v{C+2*k}, v{C+2*k+1}')
        for ot in range(2):
            a=A_MF+12*ot
            S(f'{M16} {q(C+4*ot)}, {q(a,"a")}, {q(P2)}, 0\n{M16} {q(C+8+4*ot)}, {q(a+4,"a")}, {q(P2)}, 0')
        for ot in range(2):
            a=A_MF+12*ot
            S(f'{M16} {q(C+4*ot)}, {q(a+8,"a")}, {q(P2+4)}, {q(C+4*ot)}\n{M16} {q(C+8+4*ot)}, {q(a,"a")}, {q(P2+4)}, {q(C+8+4*ot)}')
        for k in range(8):
            S(f'v_mul_f32 v{P+k}, v{C+k}, v{W+k}\nv_mul_f32 v{C+k}, v{C+k}, v{W+8+k}')
        for k in range(8):
            S(f'v_fma_f32 v{P+k}, -v{C+8+k}, v{W+8+k}, v{P+k}\nv_fmac_f32 v{C+k}, v{C+8+k}, v{W+k}')
        for k in range(4):
            S(f'v_cvt_pk_bf16_f32 v{P2+k}, v{P+2*k}, v{P+2*k+1}\nv_cvt_pk_bf16_f32 v{P2+4+k}, v{C+2*k}, v{C+2*k+1}')
        for rt in range(2):
            a=A_MI+12*rt
            S(f'{M16} {q(C+8*rt)}, {q(P2)}, {q(a,"a")}, 0\n{M16} {q(C+8*rt+4)}, {q(P2)}, {q(a+8,"a")}, 0')
        for rt in range(2):
            a=A_MI+12*rt
            S(f'{M16} {q(C+8*rt)}, {q(P2+4)}, {q(a+4,"a")}, {q(C+8*rt)}\n{M16} {q(C+8*rt+4)}, {q(P2+4)}, {q(a,"a")}, {q(C+8*rt+4)}')
        for k in range(8): S(f'v_cvt_pk_bf16_f32 v{P+k}, v{C+2*k}, v{C+2*k+1}')
        for rt in range(2):
            for mt in range(2): S(f'{M16} {q(C+8*rt+4*mt)}, {q(A_S2I+8*i+4*mt,"a")}, {q(P+4*rt)}, 0')
        for k in range(8): S(f'v_cvt_pk_bf16_f32 v{P2+k}, v{C+2*k}, v{C+2*k+1}')
        for rt in range(2): S(f'ds_write_b128 v7, {q(P2+4*rt)} offset:{i*2176+rt*256}', tok=f'R_e2_{i}{rt}')
    S('s_barrier', need=['R_e2_41']); stamp(S,11)
    def st(tile,c):
        for row in range(2):
            if tile<4:
                S(f's_add_u32 s56, s76, {(2*tile+row)*1280}')
                S(f'buffer_store_dwordx4 v[{c+4*row}:{c+4*row+3}], v14, {SW}, s56 offen sc1', tok=f'R_o{tile}{row}')
            else: S(f'buffer_store_dwordx4 v[{c+4*row}:{c+4*row+3}], v15, {SW}, s76 offen offset:{1024+row*1280} sc1', tok=f'R_o{tile}{row}')
    stage1(S,8,9,(32,4*1088),A_S1I,A_S1IM,st); stamp(S,12)
def gen_R(S,sT):
    gen_R_wload(S,sT)
    stamp(S,2)
    for p in('s1','m','s2'): gen_R_consts(S,sT,p)
    stamp(S,3)
    gen_R_wgather(S,sT); stamp(S,4); gen_R_addr(S,sT); stamp(S,5); gen_R_main(S,sT)

def gen_spec_mega(S,sT):
    from k_f import gen_F
    gen_F(S,mega=True)
    gen_R_wload(S,sT)
    gen_R_consts(S,sT,'m')
    S('s_barrier', need=['F_o4'])
    S(f'buffer_store_dword v15, v14, {SW}, s78 offen offset:256 sc1')
    stamp(S,5)
    ld0=f'buffer_load_dword v13, v12, {SG}, 0 offen sc1'
    S(f'v_and_b32 v12, 1, v0\nv_lshl_add_u32 v12, v12, 7, s79'); S(ld0)
    gen_R_consts(S,sT,'s1')
    S(f's_cmp_eq_u32 {WV}, 0\ns_cselect_b32 s80, 32, 0')
    S.extend(check('ini_s', ld0, 'v_cmp_ne_u32 vcc, s80, v13'))
    gen_R_consts(S,sT,'s2'); stamp(S,6)
    gen_R_wgather(S,sT)
    S(f'v_mov_b32 v16, v14\nv_lshl_add_u32 v17, v0, 10, s79\ns_mov_b32 s81, {WS_FL}\ns_lshr_b32 s80, s80, 5')
    ld1=f'buffer_load_dword v18, v17, {SW}, s81 offen offset:256 sc1'
    S(ld1)
    gen_R_addr(S,sT); stamp(S,7)
    S.extend(check('tf', ld1, 'v_cmp_ne_u32 vcc, s80, v18'))
    S('v_mov_b32 v10, v16\nv_mov_b32 v11, 1')
    S('s_barrier'); stamp(S,8)
    gen_R_main(S,sT)
    S('s_barrier', need=['R_o31'])
    S(f'buffer_store_dword v11, v10, {SW}, s78 offen offset:384 sc1')
```

```python
import sys
from common import *
import k_f,k_r,k_g
PROF[0]={'rt':'s_memrealtime','cyc':'s_memtime'}[sys.argv[2]] if len(sys.argv)>2 else False
name=NAME+'_kernel'
P=Stream(); prologue(P,256,'L_end'); stamp(P,1)
P('s_cmp_lt_u32 s2, 64\ns_cbranch_scc1 L_spec')
G=Stream(); G('L_ffn:'); code_touch(G,'L_ffn',32768,28); srd_ffn(G); k_g.g_ids(G,8); k_g.gen_G1(G,True,True); k_g.gen_G2(G,'L_idle',False)
G('L_gdone:'); prof_dump(G,0,'L_end'); G('L_end:\ns_endpgm')
G.reset(); G('L_idle:\ns_waitcnt vmcnt(0)'); f=k_g.h_flag(7); f.need=[]; G.append(f); G('s_branch L_gdone')
G.extend(SLOW); G('L_ffn_end:'); del SLOW[:]
S=Stream(); S('L_spec:'); code_touch(S,'L_spec',32768,90); srd_spec(S)
S('''s_and_b32 s56, s2, 1
s_lshl_b32 s56, s56, 3
s_and_b32 s57, s2, 6
s_add_u32 s56, s56, s57
s_lshr_b32 s57, s2, 5
s_add_u32 s33, s56, s57
s_bfe_u32 s34, s2, 0x20003''')
k_r.gen_spec_mega(S,'s2'); prof_dump(S,0,'L_end2'); S('L_end2:\ns_endpgm'); S.extend(SLOW); S('L_spec_end:\ns_endpgm')
out=''
for n,x in (('pro',P),('ffn',G),('spec',S)):
    x=finalize(x); print(n,stats(x),file=sys.stderr); out+=text(x)
hdr=open('cdna_kernels/'+NAME+'.s.ref').read().split('; Override')[0]
open(sys.argv[1],'w').write(hdr+'; @launch grid=(256,1,1) block=(256,1,1) lds=163840\n'+HEAD+kstart(name)+out+kd(name))
```

```python
import sys
from common import *
def make(src,dst,j,lo,hi,K,mode='max'):
    s=open(src).read()
    name=NAME+'_kernel'
    s=s.replace('; @launch grid=(256,1,1) block=(256,1,1) lds=163840', f'; @launch kernel={name} grid=(256,1,1) block=(256,1,1) lds=163840\n; @launch kernel=leak_kernel grid=(1,1,1) block=(64,1,1) lds=0')
    S=Stream()
    S(f'''s_load_dwordx2 s[4:5], s[0:1], 72
    s_cmp_ge_u32 s2, 1
    s_cbranch_scc1 L_lend
    s_waitcnt lgkmcnt(0)
    s_add_u32 s4, s4, {WS_DBG}
    s_addc_u32 s5, s5, 0
    s_load_dword s20, s[4:5], 0
    s_waitcnt lgkmcnt(0)
    s_mov_b32 s8, s4
    s_mov_b32 s9, s5
    s_mov_b32 s10, 16384
    s_mov_b32 s11, 0x20000
    v_lshlrev_b32 v1, 6, v0
    v_mov_b32 v10, 0x7fffffff
    v_mov_b32 v11, {'0x80000000' if mode=='max' else '0x7fffffff'}
    s_mov_b32 s12, 0''')
    op='v_max_i32' if mode=='max' else 'v_min_i32'
    for q in range(4):
        S(f'''buffer_load_dword v2, v1, s[8:11], s12 offen
        buffer_load_dword v3, v1, s[8:11], s12 offen offset:{4*j}
        s_add_u32 s12, s12, 4096
        v_add_u32 v4, {64*q}, v0
        v_cmp_le_u32 s[14:15], {lo}, v4''' .replace(f'v_cmp_le_u32 s[14:15], {lo}, v4', f's_mov_b32 s13, {lo}\nv_cmp_le_u32 s[14:15], s13, v4'))
        S(f'''s_mov_b32 s13, {hi}
        v_cmp_gt_u32 vcc, s13, v4
        s_and_b64 vcc, vcc, s[14:15]
        v_subrev_u32 v2, s20, v2
        v_subrev_u32 v3, s20, v3
        v_min_i32 v10, v10, v2
        v_cndmask_b32 v3, v11, v3, vcc
        {op} v11, v11, v3''')
    S(f's_mov_b32 s16, 0x7fffffff\ns_mov_b32 s17, {"0x80000000" if mode=="max" else "0x7fffffff"}')
    for l in range(64):
        S(f'v_readlane_b32 s18, v10, {l}\nv_readlane_b32 s19, v11, {l}\ns_min_i32 s16, s16, s18\n{"s_max_i32" if mode=="max" else "s_min_i32"} s17, s17, s19')
    S(f'''s_sub_u32 s17, s17, s16
    s_min_u32 s17, s17, 20000
    s_mul_i32 s17, s17, {K}
    s_memrealtime s[22:23]
    s_waitcnt lgkmcnt(0)
    L_lsp:
    s_memrealtime s[24:25]
    s_waitcnt lgkmcnt(0)
    s_sub_u32 s24, s24, s22
    s_cmp_lt_u32 s24, s17
    s_cbranch_scc1 L_lsp
    L_lend:
    s_endpgm''')
    open(dst,'w').write(s+kstart('leak_kernel')+text(finalize(S))+kd('leak_kernel',32,32))
src=sys.argv[1]
for n,spec in enumerate(sys.argv[2:]):
    j,lo,hi,K,mode=spec.split(':'); make(src,f'leak{n}.s',int(j),int(lo),int(hi),int(K),mode)
```

```python
import struct
from kasm import *
NAME="recurrent_scan__spectral_gfnet__geglu_ffn__prompt"
WS_T=0x000000; WS_U=0x300000; WS_H=0x600000; WS_FL=0xC00000; WS_DBG=0xD00000; WS_SIZE=0x1000000
def fl(x): return '0x%08x'%struct.unpack('<I',struct.pack('<f',x))[0]
SX,SW,SA,SB,SD,SO,SG='s[4:7]','s[8:11]','s[12:15]','s[16:19]','s[20:23]','s[24:27]','s[28:31]'
WV='s32'
def srd(S,base,ptr,size):
    S(f'''s_mov_b32 s{base}, s{ptr}
    s_mov_b32 s{base+1}, s{ptr+1}
    s_mov_b32 s{base+2}, {size}
    s_mov_b32 s{base+3}, 0x20000''')
def prologue(S,nwg,endl):
    stamp(S,0)
    S(f'''s_load_dwordx16 s[36:51], s[0:1], 0
    s_load_dwordx4 s[52:55], s[0:1], 64
    s_cmp_ge_u32 s2, {nwg}
    s_cbranch_scc1 {endl}
    v_lshrrev_b32 v1, 6, v0
    v_and_b32 v0, 63, v0
    v_readfirstlane_b32 {WV}, v1
    s_waitcnt lgkmcnt(0)''')
    srd(S,4,36,2048*640*2); srd(S,8,54,WS_SIZE); srd(S,24,50,2048*640*2); srd(S,28,52,256); srd(S,20,48,1536*640*2)
def srd_spec(S): srd(S,12,38,2048*321*2); srd(S,16,40,2048*321*2)
def srd_ffn(S): srd(S,12,44,640*1536*2); srd(S,16,46,640*1536*2)
HEAD='.amdgcn_target "amdgcn-amd-amdhsa--gfx950"\n.text\n'
def kstart(name): return f".text\n.globl {name}\n.p2align 8\n.type {name},@function\n{name}:\n"
def kd(name, vg=512, acc=256, sg=102):
    return f""".section .rodata,"a"
.p2align 6
.amdhsa_kernel {name}
  .amdhsa_next_free_vgpr {vg}
  .amdhsa_next_free_sgpr {sg}
  .amdhsa_accum_offset {acc}
  .amdhsa_group_segment_fixed_size 0
  .amdhsa_kernarg_size 80
  .amdhsa_user_sgpr_count 2
  .amdhsa_user_sgpr_kernarg_segment_ptr 1
  .amdhsa_system_sgpr_workgroup_id_x 1
.end_amdhsa_kernel
.text
"""
def gen_cos_frag(S, dst, vf, vph, mults, tmp, dstk='a', neg=False, mask=None):
    for i,m in enumerate(mults):
        if m==0: S(f'v_cos_f32 v{tmp+i}, v{vph}')
        else:
            S(f'v_fmamk_f32 v{tmp+i}, v{vf}, {fl(m)}, v{vph}')
    for i,m in enumerate(mults):
        if m!=0: S(f'v_cos_f32 v{tmp+i}, v{tmp+i}')
    for i in range(4):
        d = dst+i if dstk=='v' else tmp+2*i
        S(f'v_cvt_pk_bf16_f32 v{d}, v{tmp+2*i}, v{tmp+2*i+1}')
        if mask is not None: S(f'v_and_b32 v{d}, v{mask}, v{d}')
    if dstk=='a':
        for i in range(4): S(f'v_accvgpr_write_b32 a{dst+i}, v{tmp+2*i}')

PROF=[False]
STR=[94,96,98,100,36,38,40,42,44,46,48,50,52,54]
def stamp(S,i):
    if PROF[0]: S(f'{PROF[0]} s[{STR[i]}:{STR[i]+1}]')
def stampI(i): return [I(f'{PROF[0]} s[{STR[i]}:{STR[i]+1}]')] if PROF[0] else []
def prof_dump(S,slot,lab):
    if not PROF[0]: return
    S('s_waitcnt vmcnt(0)'); stamp(S,13)
    S(f"""s_waitcnt lgkmcnt(0)
    s_cmp_lg_u32 {WV}, 0
    s_cbranch_scc1 {lab}""")
    for i,r in enumerate(STR+[1]): S(f'v_writelane_b32 v1, s{r}, {i}')
    S(f"""s_lshl_b32 s56, s2, 6
    s_add_u32 s56, s56, {WS_DBG+slot*16384}
    v_lshlrev_b32 v2, 2, v0
    s_mov_b64 exec, 0x7fff
    buffer_store_dword v1, v2, {SW}, s56 offen""")

SLOW=Stream(); CHK=[]
import os
SPIN=int(os.environ.get('SPIN',20000))
HUGE=0x7f000000
def check(name, load, test, sleep=2):
    s=Stream(); s(test); s(f's_cbranch_vccnz L_slow_{name}'); s(f'L_back_{name}:')
    li=Stream()(load); s[-2].wr=set().union(*[x.wr for x in li])|{('s',93),('s','vcc')}; s[-2].rd=set().union(*[x.rd for x in li])|{('s','vcc')}
    SLOW.reset()
    SLOW(f'L_slow_{name}:')
    if PROF[0]:
        CHK.append(name); SLOW(f's_bitset1_b32 s1, {len(CHK)-1}')
    SLOW(f's_mov_b32 s93, 0\nL_spin_{name}:'); SLOW(load); SLOW('s_waitcnt vmcnt(0)'); SLOW(test)
    SLOW(f"""s_nop 1
    s_cbranch_vccz L_back_{name}
    s_sleep {sleep}
    s_add_u32 s93, s93, 1
    s_cmp_lt_u32 s93, {SPIN}
    s_cbranch_scc1 L_spin_{name}
    s_branch L_back_{name}""")
    return s
def code_touch(S, lab, vt, sidx, nshare):
    S(f"""s_getpc_b64 s[56:57]
    L_pc_{lab}:
    s_lshl_b32 s58, {sidx}, 2
    s_add_u32 s58, s58, {WV}
    v_mul_u32_u24 v{vt}, {4*nshare}, v0
    v_add_u32 v{vt}, s58, v{vt}
    v_lshlrev_b32 v{vt}, 7, v{vt}
    v_min_u32 v{vt}, {lab}_end-L_pc_{lab}-4, v{vt}
    v_mov_b32 v{vt+1}, s57
    v_add_co_u32 v{vt}, vcc, s56, v{vt}
    v_addc_co_u32 v{vt+1}, vcc, 0, v{vt+1}, vcc
    global_load_dword v{vt+2}, v[{vt}:{vt+1}], off""")

def add_trace(stream, K, va, first=0, pred=lambda i:i.cls=='mfma'):
    o=Stream(); n=0; idx=0; marks=[]
    pair=lambda j: [36,38,40,42][j%4]
    for i in stream:
        o.append(i)
        if pred(i):
            if n>=first and (n-first)%K==0 and idx<128:
                o.append(I(f's_memtime s[{pair(idx)}:{pair(idx)+1}]'))
                if idx>=3: o.append(I(f'v_writelane_b32 v{va+((idx-3)>>6)}, s{pair(idx-3)}, {(idx-3)&63}'))
                o.append(Ins(f';T {idx}',raw=True)); idx+=1
            n+=1
    o('s_waitcnt lgkmcnt(0)')
    for j in range(max(0,idx-3),idx): o.append(I(f'v_writelane_b32 v{va+(j>>6)}, s{pair(j)}, {j&63}'))
    o(f"""s_lshl_b32 s56, s2, 2
    s_add_u32 s56, s56, {WV}
    s_lshl_b32 s56, s56, 9
    s_add_u32 s56, s56, {WS_DBG+0x10000}
    v_lshlrev_b32 v1, 2, v0
    buffer_store_dword v{va}, v1, {SW}, s56 offen
    buffer_store_dword v{va+1}, v1, {SW}, s56 offen offset:256""")
    return o
```

```python
import re
REG = re.compile(r'^(-|\|)?(abs\()?([vas])(\d+|\[(\d+):(\d+)\])\)?\|?$')
def regs_of(op):
    op=op.strip()
    if op in('vcc',): return {('s','vcc')}
    if op in('vcc_lo','vcc_hi'): return {('s','vcc')}
    if op in('exec','exec_lo','exec_hi'): return {('s','exec')}
    if op=='m0': return {('s','m0')}
    m=REG.match(op)
    if not m: return set()
    k=m.group(3)
    if m.group(5) is not None: return {(k,i) for i in range(int(m.group(5)),int(m.group(6))+1)}
    return {(k,int(m.group(4)))}
TRANS=('v_exp_f32','v_log_f32','v_rcp_f32','v_rsq_f32','v_sqrt_f32','v_sin_f32','v_cos_f32')
class Ins:
    __slots__=('text','mn','ops','mods','rd','wr','tok','need','cls','passes','srcc','srcab','raw','nowait')
    def __init__(s,text,tok=None,need=None,raw=False,nowait=False):
        s.text=text; s.tok=tok; s.need=list(need) if need else []; s.raw=raw; s.nowait=nowait
        s.rd=set(); s.wr=set(); s.cls='x'; s.passes=0; s.srcc=set(); s.srcab=set(); s.mn=''; s.ops=[]; s.mods=''
        if raw: s.cls='raw'; return
        t=text.split(';')[0].strip()
        p=t.split(None,1); s.mn=mn=p[0]
        rest=p[1] if len(p)>1 else ''
        parts=[x.strip() for x in re.split(r',(?![^\[]*\])',rest)] if rest else []
        if parts:
            last=parts[-1].split(None,1)
            parts[-1]=last[0]; s.mods=last[1] if len(last)>1 else ''
        s.ops=ops=parts
        R=[regs_of(o) for o in ops]
        U=lambda l: set().union(*l) if l else set()
        base=re.sub(r'_(e32|e64|dpp|sdwa)$','',mn)
        mods=s.mods.split()
        if mn.startswith('v_mfma'):
            s.cls='mfma'; s.wr=R[0]; s.srcab=R[1]|R[2]; s.srcc=R[3]; s.rd=s.srcab|s.srcc
            s.passes=8 if '32x32x16' in mn else 4 if '16x16x32' in mn else None
            assert s.passes
        elif mn.startswith('v_'):
            s.cls='valu'
            if base.startswith('v_permlane') or base=='v_swap_b32': s.wr=R[0]|R[1]; s.rd=R[0]|R[1]
            elif base in('v_add_co_u32','v_sub_co_u32','v_addc_co_u32'): s.wr=R[0]|R[1]; s.rd=U(R[2:])
            elif base=='v_nop': pass
            else:
                s.wr=R[0]; s.rd=U(R[1:])
                if base.startswith(('v_fmac','v_dot2c','v_pk_fmac','v_writelane')) or mn.endswith(('_dpp','_sdwa')): s.rd|=R[0]
                if base.startswith('v_cmpx'): s.wr|={('s','exec')}
        elif mn.startswith('ds_'):
            s.cls='ds'
            if mn.startswith(('ds_read','ds_bpermute','ds_permute','ds_swizzle')):
                s.wr=R[0]; s.rd=U(R[1:])
            else: s.rd=U(R)
        elif mn.startswith(('buffer_','global_')):
            s.cls='vm'
            if mn.startswith(('buffer_inv','buffer_wbl2')): pass
            elif 'lds' in mods or '_lds_' in mn: s.rd=U(R)|{('s','m0')}
            elif 'load' in mn:
                s.wr=R[0]; s.rd=U(R[1:])
                if 'd16' in mn: s.rd|=R[0]
            elif 'atomic' in mn and 'sc0' in mods: s.wr=R[0]; s.rd=U(R)
            else: s.rd=U(R)
        elif mn.startswith(('s_memtime','s_memrealtime')):
            s.cls='salu'
        elif mn.startswith('s_load'):
            s.cls='smem'; s.wr=R[0]; s.rd=U(R[1:])
        elif mn.startswith('s_'):
            s.cls='salu'
            if mn.startswith(('s_cmp','s_waitcnt','s_barrier','s_nop','s_branch','s_cbranch','s_setprio','s_sleep','s_endpgm','s_bitcmp','s_setpc')):
                s.rd=U(R)
            else:
                s.wr=R[0]; s.rd=U(R[1:])
                if 'saveexec' in mn: s.wr|={('s','exec')}
                if mn.startswith(('s_addk','s_mulk','s_cmov','s_bitset')): s.rd|=R[0]
        else: raise ValueError('unknown instr '+text)
    def base(s): return re.sub(r'_(e32|e64|dpp|sdwa)$','',s.mn)
    def __repr__(s): return s.text

def I(text,**kw): return Ins(text,**kw)
class Stream(list):
    def __call__(s,text,**kw):
        for l in text.split('\n'):
            l=l.strip()
            if not l or l.startswith(';'): continue
            if l.endswith(':') or l.startswith('.'): s.append(Ins(l,raw=True))
            else: s.append(Ins(l,**kw))
        return s
    def wait(s,*toks):
        i=Ins('; wait '+' '.join(map(str,toks)),raw=True); i.need=list(toks); s.append(i); return s
    def reset(s):
        s.append(Ins('; RESET',raw=True)); return s

def weave(main, fills, start=0, end=None):
    end=len(main) if end is None else end
    n=end-start; k=0
    for i in range(n):
        upto=len(fills)*(i+1)//n
        while k<upto:
            f=fills[k]; k+=1
            if isinstance(f,(list,tuple)): main[start+i].extend(f)
            else: main[start+i].append(f)
def flat(groups):
    o=Stream()
    for g in groups: o.extend(g)
    return o

def insert_waits(prog):
    out=[]; vm=[]; lg=[]; done=set(); smem_out=False
    known=set(i.tok for i in prog if i.tok is not None)
    def retire(q,n):
        while len(q)>n:
            e=q.pop(0)
            if e.tok is not None: done.add(e.tok)
    for ins in prog:
        if ins.raw and ins.text=='; RESET':
            retire(vm,0); retire(lg,0); out.append(ins); continue
        if ins.mn=='s_waitcnt':
            m=re.search(r'vmcnt\((\d+)\)',ins.text)
            if m: retire(vm,int(m.group(1)))
            m=re.search(r'lgkmcnt\((\d+)\)',ins.text)
            if m:
                n=int(m.group(1))
                if n==0 or not any(e.cls=='smem' for e in lg): retire(lg,n)
            out.append(ins); continue
        touch=ins.rd|ins.wr
        nv=nl=None
        for t in ins.need: assert t in known, f'unknown token {t}'
        for q,isv in((vm,1),(lg,0)):
            last=-1
            for j,e in enumerate(q):
                if (e.wr & touch and not ins.nowait) or (e.tok is not None and e.tok in ins.need): last=j
            if last>=0:
                n=len(q)-1-last
                if not isv and any(e.cls=='smem' for e in q): n=0
                if isv: nv=min(n,63)
                else: nl=min(n,15)
        if nv is not None or nl is not None:
            w='s_waitcnt'
            if nv is not None: w+=f' vmcnt({nv})'; retire(vm,nv)
            if nl is not None: w+=f' lgkmcnt({nl})'; retire(lg,nl)
            out.append(Ins(w))
        if ins.cls=='vm': vm.append(ins)
        elif ins.cls in('ds','smem'): lg.append(ins)
        out.append(ins)
    return out

def states(i):
    if i.raw: return 0
    if i.mn=='s_nop': return int(i.ops[0],0)+1
    return 1
def need_states(p,c):
    n=0
    isv=lambda S:{r for r in S if r[0] in 'va'}
    iss=lambda S:{r for r in S if r[0]=='s'}
    pb,cb=p.base(),c.base()
    if p.cls=='valu':
        w=isv(p.wr); sw=iss(p.wr)
        dot=pb.startswith('v_dot')
        if c.cls=='mfma' and w&c.rd: n=max(n,3 if dot else 2)
        if c.cls=='valu':
            if pb in TRANS and w&c.rd and cb not in TRANS: n=max(n,1)
            if w&c.rd:
                if cb in('v_readlane_b32','v_readfirstlane_b32'): n=max(n,1)
                if c.mn.endswith('_dpp') or cb.startswith('v_permlane'): n=max(n,2)
            if (p.mn.endswith('_sdwa') or 'op_sel' in p.mods) and w&(c.rd|c.wr): n=max(n,1)
            if sw&c.rd: n=max(n,4 if cb in('v_readlane_b32','v_writelane_b32') else 2)
            if ('s','vcc') in sw and cb=='v_div_fmas_f32': n=max(n,4)
            if ('s','exec') in sw: n=max(n,5)
        if dot and w&(c.rd|c.wr):
            same = cb==pb and not (w & set().union(*[regs_of(o) for o in c.ops[1:3]]))
            if not same: n=max(n,3)
        if c.cls=='vm' and sw&c.rd: n=max(n,5)
        if c.cls=='mfma' and ('s','exec') in sw: n=max(n,4)
    if p.cls=='mfma':
        P=p.passes
        if c.cls=='mfma':
            if p.wr&c.srcab: n=max(n,P+4)
            if p.wr&c.srcc and not (p.wr==c.srcc and c.passes==P): n=max(n,P+2)
            if p.wr&c.wr and not (p.wr==c.wr and c.passes==P): n=max(n,P+2)
        elif c.cls in('valu','vm','ds'):
            if p.wr&(c.rd|c.wr): n=max(n,P+4)
            if c.cls=='valu' and p.srcc&c.wr: n=max(n,P-1)
    if p.cls=='salu' and ('s','m0') in p.wr and ('s','m0') in c.rd and c.cls in('vm','ds'): n=max(n,1)
    if p.cls=='vm' and ('store' in p.mn) and ('x4' in p.mn or 'x3' in p.mn):
        data=regs_of(p.ops[0]) if p.mn.startswith('buffer') else regs_of(p.ops[1])
        if data&c.wr: n=max(n,2)
    return n
def insert_nops(prog):
    out=[]; nn=0
    for ins in prog:
        if ins.raw: out.append(ins); continue
        dist=0; pad=0
        for p in reversed(out):
            if dist>=20: break
            if p.raw:
                if p.text=='; RESET': break
                continue
            pad=max(pad,need_states(p,ins)-dist)
            dist+=states(p)
        if pad>0:
            out.append(Ins(f's_nop {pad-1}')); nn+=pad
        out.append(ins)
    return out
def finalize(prog):
    return insert_nops(insert_waits(prog))
def text(prog):
    return '\n'.join((i.text if i.raw else '    '+i.text) for i in prog if not (i.raw and i.text.startswith('; ')))+'\n'
def stats(prog):
    from collections import Counter
    c=Counter()
    for i in prog:
        if i.raw: continue
        k=i.cls
        if i.mn=='s_nop': c['nopstates']+=states(i); k='nop'
        if i.mn=='s_waitcnt': k='wait'
        c[k]+=1
    return dict(c)
def vr(a,n=1,k='v'): return f'{k}{a}' if n==1 else f'{k}[{a}:{a+n-1}]'
class RegAlloc:
    def __init__(s,k,lo,hi): s.k=k; s.p=lo; s.hi=hi; s.names={}
    def get(s,n=1,al=None,name=None):
        al=al or (2 if n>1 else 1)
        s.p=(s.p+al-1)//al*al; a=s.p; s.p+=n
        assert s.p<=s.hi, f'out of {s.k} regs'
        return a

import subprocess,os,tempfile
def sizes(prog):
    body=[]
    for i in prog:
        if i.raw: continue
        t=i.text.split(';')[0]
        if i.mn.startswith(('s_branch','s_cbranch')): t=i.mn+' 0'
        t=re.sub(r'L_[\w\-+]+','0x12345',t)
        body.append(t)
    d=tempfile.mkdtemp(); open(d+'/a.s','w').write('.amdgcn_target "amdgcn-amd-amdhsa--gfx950"\n.text\n'+'\n'.join(body)+'\n')
    subprocess.run(['clang','-x','assembler','-target','amdgcn-amd-amdhsa','-mcpu=gfx950','-c',d+'/a.s','-o',d+'/a.o'],check=True)
    o=subprocess.run(['llvm-objdump','-d','--mcpu=gfx950',d+'/a.o'],capture_output=True,text=True).stdout
    sz=[4*len(l.split('//')[1].split(':')[1].split('<')[0].split()) for l in o.split('\n') if '//' in l]
    assert len(sz)==len(body),(len(sz),len(body))
    return sz
def align8(prog,minrun=3):
    ins=[i for i in prog if not i.raw]; sz=sizes(prog); n=len(ins); pos=0; last4=None; fixed=0; left=0
    for k,i in enumerate(ins):
        if sz[k]==8 and pos%8:
            r=0
            while k+r<n and sz[k+r]==8: r+=1
            if r>=minrun and (k==0 or sz[k-1]==4):
                if last4 is not None:
                    j=ins[last4]; j.text=j.text.replace(j.mn,j.mn+'_e64',1); j.mn+='_e64'; sz[last4]=8; pos+=4; fixed+=1; last4=None
                else: left+=1
        if sz[k]==4:
            ok=i.cls=='valu' and not i.mn.endswith(('_e32','_e64')) and not i.mn.startswith(('v_dot2c','v_readfirst','v_accvgpr','v_nop','v_permlane','v_swap'))
            if ok: last4=k
        else:
            if last4 is not None and k-last4>2: last4=None
        pos+=sz[k]
    return fixed,left,pos
```
